```python
import torch

def _softmax(x, axis=-1):
    return torch.softmax(x, dim=axis)

def _gelu(x):
    return torch.nn.functional.gelu(x, approximate='tanh')

def _silu(x):
    return torch.nn.functional.silu(x)

def _sigmoid(x):
    return torch.sigmoid(x)

def _layernorm(x, axis=-1, eps=1e-05):
    m = x.mean(dim=axis, keepdim=True)
    v = x.var(dim=axis, keepdim=True, unbiased=False)
    return (x - m) / torch.sqrt(v + eps)

def _scatter_add(tgt, idx, src, axis=0):
    return tgt.clone().index_add_(axis, idx, src)

def _segment_sum(src, seg, n):
    out = torch.zeros((n,) + src.shape[1:], dtype=src.dtype)
    return out.index_add_(0, seg, src)

def _pad(x, pw):
    flat = tuple((v for pair in reversed(pw) for v in pair))
    return torch.nn.functional.pad(x, flat)
kernel_name = 'adaLN_cond__sliding_local_dilated__geglu_ffn__prompt'

def setup_inputs():

    _w = lambda a: (lambda t: t.to(torch.bfloat16) if t.is_floating_point() else t)(torch.as_tensor(a))

    def _A_setup():
        B, S, D = (1, 2048, 640)
        return {'x': _w((lambda *s: torch.randn(*s, dtype=torch.bfloat16) * 0.05)(B, S, D)), 'wqkv': _w((lambda *s: torch.randn(*s, dtype=torch.bfloat16) * 0.05)(D, 3 * D)), 'wo': _w((lambda *s: torch.randn(*s, dtype=torch.bfloat16) * 0.05)(D, D))}
    _A_in = _A_setup()

    def _B_setup():
        B, S, D, F = (1, 2048, 640, 1536)
        return {'x': _w((lambda *s: torch.randn(*s, dtype=torch.bfloat16) * 0.05)(B, S, D)), 'w_gate': _w((lambda *s: torch.randn(*s, dtype=torch.bfloat16) * 0.05)(D, F)), 'w_up': _w((lambda *s: torch.randn(*s, dtype=torch.bfloat16) * 0.05)(D, F)), 'w_down': _w((lambda *s: torch.randn(*s, dtype=torch.bfloat16) * 0.05)(F, D))}
    _B_in = _B_setup()
    return {'A_x': _A_in['x'], 'A_wqkv': _A_in['wqkv'], 'A_wo': _A_in['wo'], 'B_x': _B_in['x'], 'B_w_gate': _B_in['w_gate'], 'B_w_up': _B_in['w_up'], 'B_w_down': _B_in['w_down'], 'c': _w((lambda *s: torch.randn(*s, dtype=torch.bfloat16) * 0.1)(1, 640) * 8.0), 'w_mod': _w((lambda *s: torch.randn(*s, dtype=torch.bfloat16) * 0.1)(640, 6 * 640) * 640 ** (-0.5) * 8.0)}

def reference(A_x, A_wqkv, A_wo, B_x, B_w_gate, B_w_up, B_w_down, c, w_mod):

    def _A_ref(x, wqkv, wo):
        B, S, D = x.shape
        H = 32
        Dh = D // H
        W, dil = (8, 2)
        qkv = (lambda x, *d: x.permute(*d))((x @ wqkv).reshape(B, S, 3, H, Dh), 2, 0, 3, 1, 4)
        q, k, v = (qkv[0], qkv[1], qkv[2])
        scale = Dh ** (-0.5)
        pos = torch.arange(S)
        off = torch.arange(W) * dil
        idx = pos[:, None] - off[None, :]
        mask = idx >= 0
        idx_c = torch.where(mask, idx, 0).reshape(-1)
        kg = k[:, :, idx_c, :].reshape(B, H, S, W, Dh)
        vg = v[:, :, idx_c, :].reshape(B, H, S, W, Dh)
        logits = torch.einsum('bhsd,bhswd->bhsw', q, kg) * scale
        logits = torch.where(mask[None, None, :, :], logits, -1000000000.0)
        attn = _softmax(logits, axis=-1)
        o = torch.einsum('bhsw,bhswd->bhsd', attn, vg)
        return (lambda x, *d: x.permute(*d))(o, 0, 2, 1, 3).reshape(B, S, D) @ wo

    def _B_ref(x, w_gate, w_up, w_down):
        return _gelu(x @ w_gate) * (x @ w_up) @ w_down
    x = A_x
    mod = (_silu(c) @ w_mod).reshape(c.shape[0], 6, 1, -1)
    sa, ca, ga, sb, cb, gb = (mod[:, 0].clone(), mod[:, 1].clone(), mod[:, 2].clone(), mod[:, 3].clone(), mod[:, 4].clone(), mod[:, 5].clone())
    h = _layernorm(x, axis=-1) * (1 + ca) + sa
    x = x + ga * _A_ref(h, A_wqkv, A_wo)
    h = _layernorm(x, axis=-1) * (1 + cb) + sb
    x = x + gb * _B_ref(h, B_w_gate, B_w_up, B_w_down)
    return x
```

```python
import re


def v(n, c=1):
    return f"v{n}" if c == 1 else f"v[{n}:{n + c - 1}]"


def a(n, c=1):
    return f"a{n}" if c == 1 else f"a[{n}:{n + c - 1}]"


def s(n, c=1):
    return f"s{n}" if c == 1 else f"s[{n}:{n + c - 1}]"


_REG = re.compile(r"^(-?)(abs\()?([vas])(?:(\d+)|\[(\d+):(\d+)\])\)?$")


def regs_of(op):
    op = op.strip()
    if op in ("vcc", "exec"):
        return {(op, 0), (op, 1)}
    if op in ("vcc_lo", "exec_lo"):
        return {(op[:-3], 0)}
    if op in ("vcc_hi", "exec_hi"):
        return {(op[:-3], 1)}
    if op == "m0":
        return {("m0", 0)}
    m = _REG.match(op)
    if not m:
        return set()
    cls = m.group(3)
    if m.group(4) is not None:
        return {(cls, int(m.group(4)))}
    return {(cls, i) for i in range(int(m.group(5)), int(m.group(6)) + 1)}


TRANS = ("v_exp_f32", "v_log_f32", "v_rcp_f32", "v_rsq_f32", "v_sqrt_f32", "v_sin_f32", "v_cos_f32")


class Ins:
    __slots__ = ("text", "mn", "dst", "src", "kind", "ws", "dpp", "mods")

    def __init__(self, text):
        self.text = text
        t = text.split(";")[0].strip()
        self.kind = "other"
        self.dst = set()
        self.src = set()
        self.ws = 1
        self.dpp = False
        self.mn = ""
        self.mods = ""
        if not t or t.endswith(":") or t.startswith("."):
            self.kind = "label" if t.endswith(":") else "none"
            self.ws = 0
            return
        parts = t.split(None, 1)
        mn = parts[0]
        self.mn = mn
        rest = parts[1] if len(parts) > 1 else ""
        ops, depth, cur = [], 0, ""
        for ch in rest:
            if ch in "[(":
                depth += 1
            if ch in "])":
                depth -= 1
            if ch == "," and depth == 0:
                ops.append(cur.strip())
                cur = ""
            else:
                cur += ch
        if cur.strip():
            ops.append(cur.strip())
        mods = ""
        if ops:
            sp = ops[-1].split(None, 1)
            if len(sp) > 1:
                ops[-1] = sp[0]
                mods = sp[1]
        self.mods = mods
        R = [regs_of(o) for o in ops]
        base = re.sub(r"_(e32|e64|dpp|sdwa)$", "", mn)
        if mn == "s_nop":
            self.kind = "nop"
            self.ws = int(ops[0], 0) + 1
        elif mn.startswith("v_mfma"):
            self.kind = "mfma"
            self.dst = R[0]
            self.src = R[1] | R[2] | R[3]
            self.mods = (R[1], R[2], R[3])
        elif mn.startswith("v_cmp"):
            self.kind = "valu"
            self.dst = R[0]
            self.src = set().union(*R[1:]) | {("exec", 0), ("exec", 1)}
        elif base in ("v_permlane32_swap_b32", "v_permlane16_swap_b32"):
            self.kind = "permlane"
            self.dst = R[0] | R[1]
            self.src = R[0] | R[1]
        elif base in ("v_readfirstlane_b32", "v_readlane_b32"):
            self.kind = "readlane"
            self.dst = R[0]
            self.src = set().union(*R[1:])
        elif mn.startswith("v_"):
            self.kind = "trans" if base in TRANS else "valu"
            self.dst = set(R[0])
            self.src = set().union(*R[1:]) if len(R) > 1 else set()
            if base in ("v_add_co_u32", "v_sub_co_u32", "v_addc_co_u32"):
                self.dst |= R[1]
            if base in ("v_fmac_f32", "v_pk_fmac_f16", "v_dot2c_f32_bf16"):
                self.src |= R[0]
            if base == "v_cndmask_b32" and len(ops) == 3:
                self.src |= {("vcc", 0), ("vcc", 1)}
            if "row_" in mods or "quad_perm" in mods or mn.endswith("_dpp"):
                self.dpp = True
                if "bound_ctrl" not in mods:
                    self.src |= R[0]
        elif mn.startswith("buffer_load") or mn.startswith("global_load"):
            if " lds" in (" " + mods) or "_lds_" in mn:
                self.kind = "dma"
                self.src = set().union(*R) | {("m0", 0)}
            else:
                self.kind = "vload"
                self.dst = R[0]
                self.src = set().union(*R[1:])
        elif mn.startswith("buffer_store") or mn.startswith("global_store") or mn.startswith("buffer_atomic") or mn.startswith("global_atomic"):
            self.kind = "vstore"
            self.src = set().union(*R)
            if mn.startswith("buffer_store"):
                self.mods = (R[0], mn.endswith("x4") or mn.endswith("x3"))
            elif mn.startswith("global_store"):
                self.mods = (R[1], mn.endswith("x4") or mn.endswith("x3"))
            else:
                self.mods = (set(), False)
        elif mn.startswith("ds_read") or mn.startswith("ds_bpermute") or mn.startswith("ds_swizzle"):
            self.kind = "dsread"
            self.dst = R[0]
            self.src = set().union(*R[1:])
        elif mn.startswith("ds_write"):
            self.kind = "dswrite"
            self.src = set().union(*R)
        elif mn.startswith("s_load") or mn in ("s_memtime", "s_memrealtime"):
            self.kind = "smem"
            self.dst = R[0]
            self.src = set().union(*R[1:]) if len(R) > 1 else set()
        elif mn.startswith("s_cbranch") or mn == "s_branch":
            self.kind = "branch"
        elif mn in ("s_waitcnt", "s_barrier", "s_endpgm", "s_setprio", "s_sleep"):
            self.kind = "sctl"
        elif mn.startswith("s_cmp") or mn.startswith("s_bitcmp"):
            self.kind = "salu"
            self.src = set().union(*R)
        elif mn.startswith("s_"):
            self.kind = "salu"
            self.dst = R[0]
            self.src = set().union(*R[1:]) if len(R) > 1 else set()
            if "saveexec" in mn:
                self.dst |= {("exec", 0), ("exec", 1)}
        else:
            raise ValueError("unknown instruction: " + text)


VALU_KINDS = ("valu", "trans", "permlane", "readlane")


def _need(p, c):
    n = 0
    pv = {r for r in p.dst if r[0] in "va"}
    ps = {r for r in p.dst if r[0] in ("s", "vcc")}
    if p.kind in VALU_KINDS:
        if pv & c.src:
            if c.kind == "mfma":
                n = max(n, 2)
            if c.dpp or c.kind == "permlane":
                n = max(n, 2)
            if c.kind == "readlane":
                n = max(n, 1)
            if p.kind == "trans" and c.kind in VALU_KINDS + ("mfma",):
                n = max(n, 1)
        if ps & c.src:
            if c.kind in VALU_KINDS or c.kind == "mfma":
                n = max(n, 2 if c.kind != "readlane" else 4)
            if c.kind in ("vload", "vstore", "dma"):
                n = max(n, 5)
            if c.kind in ("salu", "smem"):
                n = max(n, 4)
        if ("exec", 0) in p.dst:
            n = max(n, 5)
    if p.kind == "mfma":
        D = p.dst
        if c.kind == "mfma":
            A, B, C = c.mods
            if D & (A | B):
                n = max(n, 8)
            if D & C and C != D:
                n = max(n, 6)
            if D & c.dst and c.dst != D and not (D & C):
                n = max(n, 8)
        else:
            if D & (c.src | c.dst):
                n = max(n, 8)
        A, B, C = p.mods
        if c.kind in VALU_KINDS and (C & c.dst):
            n = max(n, 3)
    if p.kind == "salu" and ("m0", 0) in p.dst and c.kind == "dma":
        n = max(n, 1)
    if p.kind == "vstore":
        data, wide = p.mods
        if wide and (data & c.dst):
            n = max(n, 2 if c.kind in VALU_KINDS else 1)
    return n


class Asm:
    def __init__(self):
        self.ins = []
        self.pad_count = 0

    def __call__(self, text):
        for line in text.split("\n"):
            line = line.strip()
            if not line:
                continue
            self._emit(line)

    def raw(self, text):
        i = Ins(";")
        i.text = text
        self.ins.append(i)

    def _emit(self, line):
        if line.startswith(";"):
            return self.raw("    " + line)
        cur = Ins(line)
        if cur.kind in ("label", "none"):
            cur.text = line
            self.ins.append(cur)
            return
        need = 0
        dist = 0
        for p in reversed(self.ins):
            if p.ws == 0:
                continue
            if dist >= 12:
                break
            req = _need(p, cur)
            if req > dist:
                need = max(need, req - dist)
            dist += p.ws
        while need > 0:
            k = min(need, 16)
            nop = Ins(f"s_nop {k - 1}")
            nop.text = f"    s_nop {k - 1}"
            self.ins.append(nop)
            self.pad_count += 1
            need -= k
        cur.text = "    " + line
        self.ins.append(cur)

    def label(self, name, pad=True):
        self(f"{name}:")
        if pad:
            self("s_nop 7")
            self("s_nop 3")

    def text(self):
        return "\n".join(i.text for i in self.ins) + "\n"


class VmQ:
    def __init__(self, asm):
        self.asm = asm
        self.q = []

    def issue(self, text, tag):
        self.asm(text)
        self.q.append(tag)
        assert len(self.q) <= 63, "too many vector memory ops in flight: %d" % len(self.q)

    def count_after(self, pred):
        last = -1
        for i, t in enumerate(self.q):
            if pred(t):
                last = i
        if last < 0:
            return None
        return len(self.q) - 1 - last

    def wait(self, pred, extra=""):
        n = self.count_after(pred)
        if n is None:
            if extra:
                self.asm("s_waitcnt " + extra)
            return
        self.asm(f"s_waitcnt vmcnt({n})" + (" " + extra if extra else ""))
        self.q = self.q[len(self.q) - n:] if n else []

    def wait_all(self):
        self.asm("s_waitcnt vmcnt(0)")
        self.q = []


class LgQ:
    def __init__(self, asm):
        self.asm = asm
        self.q = []

    def issue(self, text, tag=None):
        self.asm(text)
        self.q.append(tag)
        assert len(self.q) <= 15, "too many LDS ops in flight: %d" % len(self.q)

    def wait(self, pred):
        last = -1
        for i, t in enumerate(self.q):
            if pred(t):
                last = i
        if last < 0:
            return
        n = len(self.q) - 1 - last
        self.asm(f"s_waitcnt lgkmcnt({n})")
        self.q = self.q[len(self.q) - n:] if n else []

    def wait_all(self):
        self.asm("s_waitcnt lgkmcnt(0)")
        self.q = []
```

```python
from asmlib import *
import layout as L

KA_X, KA_WQKV, KA_WO, KA_BX, KA_WG, KA_WU, KA_WD, KA_C, KA_WMOD, KA_OUT, KA_DBG, KA_WS = [8 * i for i in range(12)]
SZ_X = 2048 * 640 * 2
SZ_WQKV = 640 * 1920 * 2
SZ_WO = 640 * 640 * 2
SZ_WG = 640 * 1536 * 2
SZ_WD = 1536 * 640 * 2
SZ_C = 640 * 2
SZ_WMOD = 640 * 3840 * 2
SZ_OUT = 2048 * 640 * 2
LOG2E = 1.4426950408889634


def f2u(x):
    import struct
    return struct.unpack("<I", struct.pack("<f", x))[0]


def hexf(x):
    return hex(f2u(x))


def kernel_head(A, name):
    A.raw(".text")
    A.raw(f".globl {name}")
    A.raw(".p2align 8")
    A.raw(f".type {name},@function")
    A.raw(f"{name}:")


def kernel_desc(name, nvgpr_arch, nagpr, nsgpr=102):
    acc = (nvgpr_arch + 3) // 4 * 4
    total = acc + nagpr if nagpr else nvgpr_arch
    return f""".section .rodata,"a"
.p2align 6
.amdhsa_kernel {name}
  .amdhsa_next_free_vgpr {total}
  .amdhsa_next_free_sgpr {nsgpr}
  .amdhsa_accum_offset {acc}
  .amdhsa_group_segment_fixed_size 0
  .amdhsa_kernarg_size 96
  .amdhsa_user_sgpr_count 2
  .amdhsa_user_sgpr_kernarg_segment_ptr 1
  .amdhsa_system_sgpr_workgroup_id_x 1
  .amdhsa_float_denorm_mode_32 3
.end_amdhsa_kernel
"""


def load_ptr(A, srd, ka_off):
    A(f"s_load_dwordx2 {s(srd, 2)}, s[0:1], {ka_off}")


def srd_tail(A, srd, size):
    A(f"s_mov_b32 {s(srd + 2)}, {size}")
    A(f"s_mov_b32 {s(srd + 3)}, 0x20000")


def entry(A, nwg, endlabel):
    A(f"s_cmp_ge_u32 s2, {nwg}")
    A(f"s_cbranch_scc1 {endlabel}")


def wave_id(A, sdst, vtmp, vlane):
    A(f"v_lshrrev_b32 {v(vtmp)}, 6, v0")
    A(f"v_and_b32 {v(vlane)}, 63, v0")
    A(f"v_readfirstlane_b32 {s(sdst)}, {v(vtmp)}")


def swz_src_chunk(A, vdst, vlane, swave, vt, st):
    A(f"v_bfe_u32 {v(vt)}, {v(vlane)}, 4, 1")
    A(f"v_bfe_u32 {v(vdst)}, {v(vlane)}, 5, 1")
    A(f"s_and_b32 {s(st)}, {s(swave)}, 1")
    A(f"v_xor_b32 {v(vdst)}, {s(st)}, {v(vdst)}")
    A(f"v_lshl_or_b32 {v(vdst)}, {v(vdst)}, 1, {v(vt)}")
    A(f"v_lshlrev_b32 {v(vdst)}, 1, {v(vdst)}")
    A(f"v_and_b32 {v(vt)}, 7, {v(vlane)}")
    A(f"v_xor_b32 {v(vdst)}, {v(vdst)}, {v(vt)}")


def tr_addr(A, vdst, vlane, h, perm, stile, t0, t1, t3, t2, rowbytes=128, swz=True, tile_is_sgpr=True):
    A(f"v_lshrrev_b32 {v(t0)}, 4, {v(vlane)}")
    A(f"v_bfe_u32 {v(t1)}, {v(vlane)}, 2, 2")
    if perm == "nat":
        A(f"v_lshl_add_u32 {v(t0)}, {v(t0)}, 3, {v(t1)}")
        if h:
            A(f"v_add_u32 {v(t0)}, 4, {v(t0)}")
    else:
        A(f"v_lshl_add_u32 {v(t0)}, {v(t0)}, 2, {v(t1)}")
        if h:
            A(f"v_add_u32 {v(t0)}, 16, {v(t0)}")
    A(f"v_bfe_u32 {v(t1)}, {v(vlane)}, 1, 1")
    if tile_is_sgpr:
        A(f"s_lshl_b32 {s(t2)}, {s(stile)}, 1")
        A(f"v_add_u32 {v(t1)}, {s(t2)}, {v(t1)}")
    else:
        if stile:
            A(f"v_add_u32 {v(t1)}, {2 * stile}, {v(t1)}")
    if swz:
        A(f"v_bfe_u32 {v(vdst)}, {v(t0)}, 2, 1")
        A(f"v_bfe_u32 {v(t3)}, {v(t0)}, 3, 1")
        A(f"v_xor_b32 {v(vdst)}, {v(vdst)}, {v(t3)}")
        A(f"v_bfe_u32 {v(t3)}, {v(t0)}, 1, 1")
        A(f"v_lshl_or_b32 {v(vdst)}, {v(vdst)}, 1, {v(t3)}")
        A(f"v_lshlrev_b32 {v(vdst)}, 1, {v(vdst)}")
        A(f"v_xor_b32 {v(t1)}, {v(t1)}, {v(vdst)}")
    A(f"v_lshlrev_b32 {v(t1)}, 4, {v(t1)}")
    A(f"v_and_b32 {v(vdst)}, 1, {v(vlane)}")
    A(f"v_lshl_add_u32 {v(t1)}, {v(vdst)}, 3, {v(t1)}")
    sh = {128: 7, 256: 8}[rowbytes]
    A(f"v_lshl_add_u32 {v(vdst)}, {v(t0)}, {sh}, {v(t1)}")


def round_bf16(A, vdst, vsrc0, vsrc1, vtmp):
    A(f"v_cvt_pk_bf16_f32 {v(vtmp)}, {v(vsrc0)}, {v(vsrc1)}")
    A(f"v_lshlrev_b32 {v(vdst)}, 16, {v(vtmp)}")
    A(f"v_and_b32 {v(vdst + 1)}, 0xffff0000, {v(vtmp)}")
```

```python
from asmlib import *


class Core:
    def __init__(self, A, vq, nsteps, G, R):
        self.A, self.vq = A, vq
        self.nsteps, self.G, self.R = nsteps, G, R
        assert nsteps % G == 0
        self.nst = nsteps // G

    def stage_loads(self, st):
        raise NotImplementedError

    def step_reads(self, k):
        raise NotImplementedError

    def step_mfmas(self, k):
        raise NotImplementedError

    def extra_fill(self, k):
        return []

    def prologue_loads(self):
        for st in range(min(self.R, self.nst)):
            for f in self.stage_loads(st):
                f()

    def run(self, before_first=None):
        A, vq, G, R = self.A, self.vq, self.G, self.R
        vq.wait(lambda t: t == ("st", 0))
        A("s_barrier")
        if before_first:
            before_first()
        for r in self.step_reads(0):
            A(r)
        for k in range(self.nsteps):
            st, kk = divmod(k, G)
            fill = []
            if kk == G - 1 and st + 1 < self.nst:
                vq.wait(lambda t: t[0] == "st" and t[1] <= st + 1, extra="lgkmcnt(0)")
                A("s_barrier")
                if st + R < self.nst:
                    fill_loads = self.stage_loads(st + R)
                else:
                    fill_loads = []
            else:
                A("s_waitcnt lgkmcnt(0)")
                fill_loads = []
            reads = self.step_reads(k + 1) if k + 1 < self.nsteps else []
            assert len(reads) <= 15
            fill = [(lambda r=r: A(r)) for r in reads] + list(fill_loads) + list(self.extra_fill(k))
            mf = self.step_mfmas(k)
            n = len(mf)
            fi = 0
            for i, m in enumerate(mf):
                A(m)
                left_m = n - i
                left_f = len(fill) - fi
                if left_f <= 0:
                    continue
                cnt = 1 if fi < len(reads) and left_f <= 2 * left_m else -(-left_f // left_m)
                for _ in range(min(cnt, left_f)):
                    fill[fi]()
                    fi += 1
            while fi < len(fill):
                fill[fi]()
                fi += 1
```

```python
from common import *

NAME = "k0_prep_kernel"
SV = 0
C1 = SV + 1536
CH = 2048
STRIP = CH + 65536
LDS = STRIP + 81920

SRD_X, SRD_WQKV, SRD_WO, SRD_C, SRD_WMOD, SRD_WS = 8, 12, 16, 20, 24, 28
sW, sX, sSLOT, sTYPE, sCOL, sKB, sHP, sWOID = 32, 33, 34, 35, 36, 37, 38, 39
sT0, sT1, sT2, sT3 = 40, 41, 42, 43
vLANE, vL16, vT0, vT1, vT2, vT3 = 1, 2, 3, 4, 5, 6
vSTRIP = 7
vCHK = 8
vG16 = 9
vTRA, vTRB, vTRA2, vTRB2 = 10, 11, 12, 13
vXO = 14
vACC = 16
vB = 24


def silu_job(A):
    A(f"v_subrev_u32 {v(vT0)}, 128, v0")
    A(f"v_lshlrev_b32 {v(vXO)}, 2, {v(vT0)}")
    for i in range(3):
        A(f"buffer_load_dword {v(vB + i)}, {v(vXO)}, {s(SRD_C, 4)}, 0 offen offset:{512 * i}")


def silu_compute(A):
    A(f"s_mov_b32 {s(sT0)}, {hexf(-LOG2E)}")
    for i in range(3):
        lo, hi = vB + 4 + 2 * i, vB + 5 + 2 * i
        A(f"v_lshlrev_b32 {v(lo)}, 16, {v(vB + i)}")
        A(f"v_and_b32 {v(hi)}, 0xffff0000, {v(vB + i)}")
    for r in range(6):
        A(f"v_mul_f32 {v(vB + 12 + r)}, {s(sT0)}, {v(vB + 4 + r)}")
    for r in range(6):
        A(f"v_exp_f32 {v(vB + 12 + r)}, {v(vB + 12 + r)}")
    for r in range(6):
        A(f"v_add_f32 {v(vB + 12 + r)}, 1.0, {v(vB + 12 + r)}")
    for r in range(6):
        A(f"v_rcp_f32 {v(vB + 12 + r)}, {v(vB + 12 + r)}")
    for r in range(6):
        A(f"v_mul_f32 {v(vB + 12 + r)}, {v(vB + 4 + r)}, {v(vB + 12 + r)}")
    for i in range(3):
        A(f"v_cvt_pk_bf16_f32 {v(vB + i)}, {v(vB + 12 + 2 * i)}, {v(vB + 13 + 2 * i)}")
    for i in range(3):
        A(f"ds_write_b32 {v(vXO)}, {v(vB + i)} offset:{SV + 512 * i}")


def xhat_loads(A):
    A(f"s_lshl_b32 {s(sT0)}, s2, 3")
    A(f"s_lshl_b32 {s(sT1)}, {s(sW)}, 2")
    A(f"s_add_u32 {s(sT0)}, {s(sT0)}, {s(sT1)}")
    A(f"v_lshrrev_b32 {v(vT0)}, 4, {v(vLANE)}")
    A(f"v_add_u32 {v(vT0)}, {s(sT0)}, {v(vT0)}")
    A(f"s_movk_i32 {s(sT1)}, 1280")
    A(f"v_mul_lo_u32 {v(vXO)}, {v(vT0)}, {s(sT1)}")
    A(f"v_and_b32 {v(vT0)}, 15, {v(vLANE)}")
    A(f"v_lshl_add_u32 {v(vXO)}, {v(vT0)}, 4, {v(vXO)}")
    for j in range(5):
        A(f"buffer_load_dwordx4 {v(vB + 4 * j, 4)}, {v(vXO)}, {s(SRD_X, 4)}, 0 offen offset:{256 * j}")


def dpp_rowsum(A, r):
    for n in (8, 4, 2, 1):
        A(f"v_add_f32_dpp {v(r)}, {v(r)}, {v(r)} row_ror:{n} row_mask:0xf bank_mask:0xf")


def xhat_compute(A):
    xr = vB
    f = vB + 20
    assert f % 2 == 0
    for q in range(20):
        A(f"v_lshlrev_b32 {v(f + 2 * q)}, 16, {v(xr + q)}")
        A(f"v_and_b32 {v(f + 2 * q + 1)}, 0xffff0000, {v(xr + q)}")
    acc = vB + 60
    A(f"v_pk_add_f32 {v(acc, 2)}, {v(f, 2)}, {v(f + 2, 2)}")
    A(f"v_pk_add_f32 {v(acc + 2, 2)}, {v(f + 4, 2)}, {v(f + 6, 2)}")
    for q in range(4, 20, 2):
        A(f"v_pk_add_f32 {v(acc, 2)}, {v(acc, 2)}, {v(f + 2 * q, 2)}")
        A(f"v_pk_add_f32 {v(acc + 2, 2)}, {v(acc + 2, 2)}, {v(f + 2 * q + 2, 2)}")
    A(f"v_pk_add_f32 {v(acc, 2)}, {v(acc, 2)}, {v(acc + 2, 2)}")
    A(f"v_add_f32 {v(acc)}, {v(acc)}, {v(acc + 1)}")
    dpp_rowsum(A, acc)
    A(f"v_mul_f32 {v(acc)}, {hexf(-1.0 / 640)}, {v(acc)}")
    for q in range(20):
        A(f"v_pk_add_f32 {v(f + 2 * q, 2)}, {v(f + 2 * q, 2)}, {v(acc, 2)} op_sel_hi:[1,0]")
    A(f"v_pk_mul_f32 {v(acc + 2, 2)}, {v(f, 2)}, {v(f, 2)}")
    A(f"v_pk_mul_f32 {v(acc + 4, 2)}, {v(f + 2, 2)}, {v(f + 2, 2)}")
    for q in range(2, 20, 2):
        A(f"v_pk_fma_f32 {v(acc + 2, 2)}, {v(f + 2 * q, 2)}, {v(f + 2 * q, 2)}, {v(acc + 2, 2)}")
        A(f"v_pk_fma_f32 {v(acc + 4, 2)}, {v(f + 2 * q + 2, 2)}, {v(f + 2 * q + 2, 2)}, {v(acc + 4, 2)}")
    A(f"v_pk_add_f32 {v(acc + 2, 2)}, {v(acc + 2, 2)}, {v(acc + 4, 2)}")
    A(f"v_add_f32 {v(acc + 2)}, {v(acc + 2)}, {v(acc + 3)}")
    dpp_rowsum(A, acc + 2)
    A(f"v_mov_b32 {v(acc + 3)}, {hexf(1e-5)}")
    A(f"v_fmac_f32 {v(acc + 3)}, {hexf(1.0 / 640)}, {v(acc + 2)}")
    A(f"v_rsq_f32 {v(acc + 2)}, {v(acc + 3)}")
    for q in range(20):
        A(f"v_pk_mul_f32 {v(f + 2 * q, 2)}, {v(f + 2 * q, 2)}, {v(acc + 2, 2)} op_sel_hi:[1,0]")
    for q in range(20):
        A(f"v_cvt_pk_bf16_f32 {v(xr + q)}, {v(f + 2 * q)}, {v(f + 2 * q + 1)}")
    A(f"v_and_b32 {v(vT0)}, 15, {v(vLANE)}")
    A(f"v_lshrrev_b32 {v(vT1)}, 2, {v(vT0)}")
    A(f"s_mov_b32 {s(sT0)}, {129 * 1024}")
    A(f"v_mul_lo_u32 {v(vXO)}, {v(vT1)}, {s(sT0)}")
    A(f"v_and_b32 {v(vT0)}, 3, {v(vT0)}")
    A(f"v_lshl_add_u32 {v(vXO)}, {v(vT0)}, 8, {v(vXO)}")
    A(f"v_lshrrev_b32 {v(vT0)}, 4, {v(vLANE)}")
    A(f"v_lshl_add_u32 {v(vXO)}, {v(vT0)}, 4, {v(vXO)}")
    A(f"s_lshr_b32 {s(sT0)}, s2, 1")
    A(f"s_add_u32 {s(sT0)}, {s(sT0)}, 1")
    A(f"s_lshl_b32 {s(sT0)}, {s(sT0)}, 10")
    A(f"s_and_b32 {s(sT1)}, s2, 1")
    A(f"s_lshl_b32 {s(sT1)}, {s(sT1)}, 7")
    A(f"s_add_u32 {s(sT0)}, {s(sT0)}, {s(sT1)}")
    A(f"s_lshl_b32 {s(sT1)}, {s(sW)}, 6")
    A(f"s_add_u32 {s(sT0)}, {s(sT0)}, {s(sT1)}")
    if L.XH:
        A(f"s_add_u32 {s(sT0)}, {s(sT0)}, {L.XH}")
    for j in range(5):
        A(f"buffer_store_dwordx4 {v(xr + 4 * j, 4)}, {v(vXO)}, {s(SRD_WS, 4)}, {s(sT0)} offen")
        if j < 4:
            A(f"s_add_u32 {s(sT0)}, {s(sT0)}, {4 * 129 * 1024}")


def pad_zero(A):
    for r in range(4):
        A(f"v_mov_b32 {v(vB + 32 + r)}, 0")
    A(f"s_sub_u32 {s(sT0)}, {s(sW)}, 2")
    A(f"s_mul_i32 {s(sT0)}, {s(sT0)}, {10 * 129 * 1024}")
    if L.XH:
        A(f"s_add_u32 {s(sT0)}, {s(sT0)}, {L.XH}")
    for j in range(10):
        A(f"buffer_store_dwordx4 {v(vB + 32, 4)}, {v(vL16)}, {s(SRD_WS, 4)}, {s(sT0)} offen")
        if j < 9:
            A(f"s_add_u32 {s(sT0)}, {s(sT0)}, {129 * 1024}")


def strip_dma(A):
    swz_src_chunk(A, vT0, vLANE, sW, vT1, sT0)
    A(f"v_lshrrev_b32 {v(vT1)}, 3, {v(vLANE)}")
    A(f"s_movk_i32 {s(sT0)}, 7680")
    A(f"v_mul_lo_u32 {v(vSTRIP)}, {v(vT1)}, {s(sT0)}")
    A(f"v_lshl_add_u32 {v(vSTRIP)}, {v(vT0)}, 4, {v(vSTRIP)}")
    A(f"s_mul_i32 {s(sT0)}, {s(sW)}, 61440")
    A(f"s_add_u32 {s(sT0)}, {s(sT0)}, {s(sCOL)}")
    A(f"s_lshl_b32 {s(sT1)}, {s(sW)}, 10")
    if STRIP:
        A(f"s_add_u32 {s(sT1)}, {s(sT1)}, {STRIP}")
    for u in range(20):
        A(f"s_mov_b32 m0, {s(sT1)}")
        if u + 1 < 20:
            A(f"s_add_u32 {s(sT1)}, {s(sT1)}, 4096")
        A(f"buffer_load_dwordx4 {v(vSTRIP)}, {s(SRD_WMOD, 4)}, {s(sT0)} offen lds")
        if u + 1 < 20:
            A(f"s_add_u32 {s(sT0)}, {s(sT0)}, {4 * 61440}")


def qkv_chunk_voff(A):
    A(f"v_and_b32 {v(vT0)}, 15, {v(vLANE)}")
    A(f"v_min_u32 {v(vT0)}, 14, {v(vT0)}")
    A(f"v_mul_u32_u24 {v(vT1)}, 52, {v(vT0)}")
    A(f"v_lshrrev_b32 {v(vT1)}, 8, {v(vT1)}")
    A(f"v_mul_u32_u24 {v(vT2)}, 5, {v(vT1)}")
    A(f"v_sub_u32 {v(vT0)}, {v(vT0)}, {v(vT2)}")
    A(f"v_lshlrev_b32 {v(vT0)}, 4, {v(vT0)}")
    A(f"v_mul_u32_u24 {v(vT1)}, 1280, {v(vT1)}")
    A(f"v_add_u32 {v(vT0)}, {v(vT0)}, {v(vT1)}")
    A(f"v_lshrrev_b32 {v(vT1)}, 4, {v(vLANE)}")
    A(f"v_mul_u32_u24 {v(vT1)}, 3840, {v(vT1)}")
    A(f"v_add_u32 {v(vCHK)}, {v(vT0)}, {v(vT1)}")


def chunk_dma_C(A):
    qkv_chunk_voff(A)
    A(f"s_lshl_b32 {s(sT0)}, {s(sKB)}, 4")
    A(f"s_add_u32 {s(sT0)}, {s(sT0)}, {s(sW)}")
    A(f"s_mul_i32 {s(sT0)}, {s(sT0)}, {4 * 3840}")
    A(f"s_mul_i32 {s(sT1)}, {s(sHP)}, 80")
    A(f"s_add_u32 {s(sT0)}, {s(sT0)}, {s(sT1)}")
    A(f"s_lshl_b32 {s(sT1)}, {s(sW)}, 10")
    A(f"s_add_u32 {s(sT1)}, {s(sT1)}, {CH}")
    for u in range(4):
        A(f"s_mov_b32 m0, {s(sT1)}")
        A(f"s_add_u32 {s(sT1)}, {s(sT1)}, 4096")
        A(f"buffer_load_dwordx4 {v(vCHK)}, {s(SRD_WQKV, 4)}, {s(sT0)} offen lds")
        A(f"s_add_u32 {s(sT0)}, {s(sT0)}, {16 * 3840}")


def chunk_dma_D(A):
    qkv_chunk_voff(A)
    A(f"s_mul_i32 {s(sT0)}, {s(sKB)}, {64 * 3840}")
    A(f"s_lshl_b32 {s(sT1)}, {s(sHP)}, 2")
    A(f"s_add_u32 {s(sT1)}, {s(sT1)}, {s(sW)}")
    A(f"s_mul_i32 {s(sT1)}, {s(sT1)}, 80")
    A(f"s_add_u32 {s(sT0)}, {s(sT0)}, {s(sT1)}")
    A(f"s_lshl_b32 {s(sT1)}, {s(sW)}, 14")
    A(f"s_add_u32 {s(sT1)}, {s(sT1)}, {CH}")
    for u in range(16):
        A(f"s_mov_b32 m0, {s(sT1)}")
        A(f"s_add_u32 {s(sT1)}, {s(sT1)}, 1024")
        A(f"buffer_load_dwordx4 {v(vCHK)}, {s(SRD_WQKV, 4)}, {s(sT0)} offen lds")
        A(f"s_add_u32 {s(sT0)}, {s(sT0)}, {4 * 3840}")


def chunk128_dma(A, srd, rowbytes, s_row0, s_colbytes, ldsbase, vchk, vlane, sw, t, st, q=None, tag=None, nt=False):
    swz_src_chunk(A, t[0], vlane, sw, t[1], st[0])
    A(f"v_lshrrev_b32 {v(t[1])}, 3, {v(vlane)}")
    A(f"v_mul_u32_u24 {v(vchk)}, {rowbytes}, {v(t[1])}")
    A(f"v_lshl_add_u32 {v(vchk)}, {v(t[0])}, 4, {v(vchk)}")
    A(f"s_lshl_b32 {s(st[0])}, {s(sw)}, 3")
    A(f"s_add_u32 {s(st[0])}, {s(st[0])}, {s(s_row0)}")
    A(f"s_mul_i32 {s(st[0])}, {s(st[0])}, {rowbytes}")
    A(f"s_add_u32 {s(st[0])}, {s(st[0])}, {s(s_colbytes)}")
    A(f"s_lshl_b32 {s(st[1])}, {s(sw)}, 10")
    A(f"s_add_u32 {s(st[1])}, {s(st[1])}, {ldsbase}")
    for u in range(4):
        A(f"s_mov_b32 m0, {s(st[1])}")
        A(f"s_add_u32 {s(st[1])}, {s(st[1])}, 4096")
        txt = f"buffer_load_dwordx4 {v(vchk)}, {s(srd, 4)}, {s(st[0])} offen" + (" nt" if nt else "") + " lds"
        if q is None:
            A(txt)
        else:
            q.issue(txt, tag)
        A(f"s_add_u32 {s(st[0])}, {s(st[0])}, {32 * rowbytes}")


def chunk_dma_WO(A):
    A(f"s_mul_i32 {s(sT2)}, {s(sWOID)}, 205")
    A(f"s_lshr_b32 {s(sT2)}, {s(sT2)}, 11")
    A(f"s_mul_i32 {s(sT3)}, {s(sT2)}, 10")
    A(f"s_sub_u32 {s(sT3)}, {s(sWOID)}, {s(sT3)}")
    A(f"s_lshl_b32 {s(sT2)}, {s(sT2)}, 7")
    A(f"s_lshl_b32 {s(sT3)}, {s(sT3)}, 7")
    chunk128_dma(A, SRD_WO, 1280, sT2, sT3, CH, vCHK, vLANE, sW, (vT0, vT1), (sT0, sT1))


def gemv(A):
    tr_addr(A, vTRA, vLANE, 0, "nat", sW, vT0, vT1, vT2, sT0)
    tr_addr(A, vTRB, vLANE, 1, "nat", sW, vT0, vT1, vT2, sT0)
    A(f"v_add_u32 {v(vTRA)}, {STRIP}, {v(vTRA)}")
    A(f"v_add_u32 {v(vTRB)}, {STRIP}, {v(vTRB)}")
    A(f"v_add_u32 {v(vTRA2)}, 0x10000, {v(vTRA)}")
    A(f"v_add_u32 {v(vTRB2)}, 0x10000, {v(vTRB)}")
    A(f"v_lshrrev_b32 {v(vG16)}, 4, {v(vLANE)}")
    A(f"v_lshlrev_b32 {v(vG16)}, 4, {v(vG16)}")
    lq = LgQ(A)

    def reads(ks):
        b = vB + 8 * (ks % 4)
        ra, rb = (vTRA, vTRB) if ks < 16 else (vTRA2, vTRB2)
        off = (ks % 16) * 4096
        lq.issue(f"ds_read_b64_tr_b16 {v(b, 2)}, {v(ra)} offset:{off}", ks)
        lq.issue(f"ds_read_b64_tr_b16 {v(b + 2, 2)}, {v(rb)} offset:{off}", ks)
        lq.issue(f"ds_read_b128 {v(b + 4, 4)}, {v(vG16)} offset:{SV + ks * 64}", ks)
    for ks in range(3):
        reads(ks)
    for ks in range(20):
        if ks + 3 < 20:
            reads(ks + 3)
        lq.wait(lambda t: t <= ks)
        b = vB + 8 * (ks % 4)
        c = v(vACC, 4) if ks else "0"
        A(f"v_mfma_f32_16x16x32_bf16 {v(vACC, 4)}, {v(b, 4)}, {v(b + 4, 4)}, {c}")


EXEC_J0 = "0x0001000100010001"


def exec_j0(A):
    A(f"s_mov_b32 exec_lo, 0x00010001")
    A(f"s_mov_b32 exec_hi, 0x00010001")


def exec_all(A):
    A("s_mov_b64 exec, -1")


def tail_C(A):
    r = vB
    round_bf16(A, r, vACC, vACC + 1, vT0)
    round_bf16(A, r + 2, vACC + 2, vACC + 3, vT0)
    A(f"v_pk_add_f32 {v(r, 2)}, {v(r, 2)}, 1.0 op_sel_hi:[1,0]")
    A(f"v_pk_add_f32 {v(r + 2, 2)}, {v(r + 2, 2)}, 1.0 op_sel_hi:[1,0]")
    round_bf16(A, r + 4, r, r + 1, vT0)
    round_bf16(A, r + 6, r + 2, r + 3, vT0)
    A(f"s_lshl_b32 {s(sT0)}, {s(sW)}, 6")
    A(f"v_add_u32 {v(vT0)}, {s(sT0)}, {v(vG16)}")
    exec_j0(A)
    A(f"ds_write_b128 {v(vT0)}, {v(r + 4, 4)} offset:{C1}")
    exec_all(A)
    A("s_waitcnt lgkmcnt(0)")
    A("s_barrier")
    A(f"s_lshl_b32 {s(sT1)}, {s(sW)}, 1")
    tr_addr(A, vTRA, vLANE, 0, "nat", sT1, vT0, vT1, vT2, sT0, rowbytes=256, swz=False)
    tr_addr(A, vTRB, vLANE, 1, "nat", sT1, vT0, vT1, vT2, sT0, rowbytes=256, swz=False)
    fr = vB + 8
    for ks in range(2):
        for p in range(2):
            b = fr + 4 * (2 * ks + p)
            off = CH + ks * 32 * 256 + p * 32
            A(f"ds_read_b64_tr_b16 {v(b, 2)}, {v(vTRA)} offset:{off}")
            A(f"ds_read_b64_tr_b16 {v(b + 2, 2)}, {v(vTRB)} offset:{off}")
    cs = vB + 24
    A(f"v_lshlrev_b32 {v(vT0)}, 1, {v(vG16)}")
    for ks in range(2):
        A(f"ds_read_b128 {v(cs + 8 * ks, 4)}, {v(vT0)} offset:{C1 + ks * 128}")
        A(f"ds_read_b128 {v(cs + 8 * ks + 4, 4)}, {v(vT0)} offset:{C1 + ks * 128 + 16}")
    A(f"s_mul_i32 {s(sT0)}, {s(sHP)}, 20")
    A(f"s_lshl_b32 {s(sT1)}, {s(sKB)}, 1")
    A(f"s_add_u32 {s(sT0)}, {s(sT0)}, {s(sT1)}")
    A(f"s_lshl_b32 {s(sT0)}, {s(sT0)}, 3")
    A(f"s_lshl_b32 {s(sT1)}, {s(sW)}, 1")
    A(f"s_add_u32 {s(sT0)}, {s(sT0)}, {s(sT1)}")
    A(f"s_lshl_b32 {s(sT0)}, {s(sT0)}, 10")
    A(f"s_add_u32 {s(sT0)}, {s(sT0)}, {L.WQ}")
    A(f"s_add_u32 {s(sT1)}, {s(sT0)}, 8192")
    A("s_waitcnt lgkmcnt(0)")
    u = vB + 40
    for ks in range(2):
        for p in range(2):
            b = fr + 4 * (2 * ks + p)
            for q in range(4):
                A(f"v_lshlrev_b32 {v(u + 2 * q)}, 16, {v(b + q)}")
                A(f"v_and_b32 {v(u + 2 * q + 1)}, 0xffff0000, {v(b + q)}")
            for q in range(4):
                A(f"v_pk_mul_f32 {v(u + 2 * q, 2)}, {v(u + 2 * q, 2)}, {v(cs + 8 * ks + 2 * q, 2)}")
            for q in range(4):
                A(f"v_cvt_pk_bf16_f32 {v(b + q)}, {v(u + 2 * q)}, {v(u + 2 * q + 1)}")
            A(f"buffer_store_dwordx4 {v(b, 4)}, {v(vL16)}, {s(SRD_WS, 4)}, {s(sT0 + ks)} offen offset:{1024 * p}")


def tail_D(A):
    A(f"v_cvt_pk_bf16_f32 {v(vB)}, {v(vACC)}, {v(vACC + 1)}")
    A(f"v_cvt_pk_bf16_f32 {v(vB + 1)}, {v(vACC + 2)}, {v(vACC + 3)}")
    A(f"s_lshl_b32 {s(sT0)}, {s(sW)}, 5")
    A(f"v_lshrrev_b32 {v(vT0)}, 1, {v(vG16)}")
    A(f"v_add_u32 {v(vT0)}, {s(sT0)}, {v(vT0)}")
    exec_j0(A)
    A(f"ds_write_b64 {v(vT0)}, {v(vB, 2)} offset:{C1}")
    exec_all(A)
    A("s_waitcnt lgkmcnt(0)")
    A("s_barrier")
    sa = vB + 4
    for ks in range(2):
        A(f"ds_read_b128 {v(sa + 4 * ks, 4)}, {v(vG16)} offset:{C1 + ks * 64}")
    tr_addr(A, vTRA, vLANE, 0, "nat", 0, vT0, vT1, vT2, sT0, rowbytes=256, swz=False, tile_is_sgpr=False)
    tr_addr(A, vTRB, vLANE, 1, "nat", 0, vT0, vT1, vT2, sT0, rowbytes=256, swz=False, tile_is_sgpr=False)
    A(f"s_lshl_b32 {s(sT0)}, {s(sW)}, 14")
    A(f"v_add_u32 {v(vTRA)}, {s(sT0)}, {v(vTRA)}")
    A(f"v_add_u32 {v(vTRB)}, {s(sT0)}, {v(vTRB)}")
    A(f"s_lshl_b32 {s(sT0)}, {s(sKB)}, 4")
    A(f"s_lshl_b32 {s(sT1)}, {s(sHP)}, 2")
    A(f"s_add_u32 {s(sT0)}, {s(sT0)}, {s(sT1)}")
    A(f"s_add_u32 {s(sT0)}, {s(sT0)}, {s(sW)}")
    A(f"s_lshl_b32 {s(sT0)}, {s(sT0)}, 9")
    A(f"s_add_u32 {s(sT0)}, {s(sT0)}, {L.T1}")
    fr = vB + 16
    acc = vB + 48
    lq = LgQ(A)
    lq.q = ["sa", "sa"]

    def reads(nt):
        for ks in range(2):
            b = fr + 8 * (nt % 2) + 4 * ks
            off = CH + ks * 32 * 256 + nt * 32
            lq.issue(f"ds_read_b64_tr_b16 {v(b, 2)}, {v(vTRA)} offset:{off}", nt)
            lq.issue(f"ds_read_b64_tr_b16 {v(b + 2, 2)}, {v(vTRB)} offset:{off}", nt)
    reads(0)
    for nt in range(8):
        if nt + 1 < 8:
            reads(nt + 1)
        lq.wait(lambda t: t == "sa" or t <= nt)
        b = fr + 8 * (nt % 2)
        A(f"v_mfma_f32_16x16x32_bf16 {v(acc + 4 * nt, 4)}, {v(b, 4)}, {v(sa, 4)}, 0")
        A(f"v_mfma_f32_16x16x32_bf16 {v(acc + 4 * nt, 4)}, {v(b + 4, 4)}, {v(sa + 4, 4)}, {v(acc + 4 * nt, 4)}")
    exec_j0(A)
    for nt in range(8):
        A(f"buffer_store_dwordx4 {v(acc + 4 * nt, 4)}, {v(vG16)}, {s(SRD_WS, 4)}, {s(sT0)} offen offset:{64 * nt}")
    exec_all(A)


def tail_B(A):
    r = vB
    round_bf16(A, r, vACC, vACC + 1, vT0)
    round_bf16(A, r + 2, vACC + 2, vACC + 3, vT0)
    A(f"s_cmp_lt_u32 {s(sWOID)}, 20")
    A("s_cbranch_scc1 k0_B_store")
    A(f"s_cmp_ge_u32 {s(sWOID)}, 30")
    A("s_cbranch_scc1 k0_B_store")
    A(f"v_pk_add_f32 {v(r, 2)}, {v(r, 2)}, 1.0 op_sel_hi:[1,0]")
    A(f"v_pk_add_f32 {v(r + 2, 2)}, {v(r + 2, 2)}, 1.0 op_sel_hi:[1,0]")
    round_bf16(A, r, r, r + 1, vT0)
    round_bf16(A, r + 2, r + 2, r + 3, vT0)
    A.label("k0_B_store")
    A(f"s_lshl_b32 {s(sT0)}, {s(sWOID)}, 8")
    A(f"s_lshl_b32 {s(sT1)}, {s(sW)}, 6")
    A(f"s_add_u32 {s(sT0)}, {s(sT0)}, {s(sT1)}")
    A(f"s_add_u32 {s(sT0)}, {s(sT0)}, {L.MOD}")
    exec_j0(A)
    A(f"buffer_store_dwordx4 {v(r, 4)}, {v(vG16)}, {s(SRD_WS, 4)}, {s(sT0)} offen")
    exec_all(A)


def repack_WO(A):
    A(f"s_mul_i32 {s(sT2)}, {s(sWOID)}, 205")
    A(f"s_lshr_b32 {s(sT2)}, {s(sT2)}, 11")
    A(f"s_mul_i32 {s(sT3)}, {s(sT2)}, 10")
    A(f"s_sub_u32 {s(sT3)}, {s(sWOID)}, {s(sT3)}")
    A(f"s_lshl_b32 {s(sT3)}, {s(sT3)}, 2")
    A(f"s_add_u32 {s(sT3)}, {s(sT3)}, {s(sW)}")
    A(f"s_mul_i32 {s(sT0)}, {s(sT3)}, 205")
    A(f"s_lshr_b32 {s(sT0)}, {s(sT0)}, 10")
    A(f"s_mul_i32 {s(sT1)}, {s(sT0)}, 5")
    A(f"s_sub_u32 {s(sT1)}, {s(sT3)}, {s(sT1)}")
    A(f"s_mul_i32 {s(sT0)}, {s(sT0)}, 20")
    A(f"s_lshl_b32 {s(sT2)}, {s(sT2)}, 2")
    A(f"s_add_u32 {s(sT0)}, {s(sT0)}, {s(sT2)}")
    A(f"s_mul_i32 {s(sT0)}, {s(sT0)}, 5")
    A(f"s_add_u32 {s(sT0)}, {s(sT0)}, {s(sT1)}")
    A(f"s_lshl_b32 {s(sT0)}, {s(sT0)}, 10")
    A(f"s_add_u32 {s(sT0)}, {s(sT0)}, {L.WO}")
    tr_addr(A, vTRA, vLANE, 0, "nat", sW, vT0, vT1, vT2, sT1)
    tr_addr(A, vTRB, vLANE, 1, "nat", sW, vT0, vT1, vT2, sT1)
    fr = vB + 16
    for ks in range(4):
        A(f"ds_read_b64_tr_b16 {v(fr + 4 * ks, 2)}, {v(vTRA)} offset:{CH + ks * 4096}")
        A(f"ds_read_b64_tr_b16 {v(fr + 4 * ks + 2, 2)}, {v(vTRB)} offset:{CH + ks * 4096}")
    for ks in range(4):
        A(f"s_waitcnt lgkmcnt({6 - 2 * ks})")
        A(f"buffer_store_dwordx4 {v(fr + 4 * ks, 4)}, {v(vL16)}, {s(SRD_WS, 4)}, {s(sT0)} offen")
        if ks < 3:
            A(f"s_add_u32 {s(sT0)}, {s(sT0)}, 5120")


def gen(A):
    kernel_head(A, NAME)
    entry(A, 256, "k0_end")
    for srd, ka in ((SRD_X, KA_X), (SRD_WQKV, KA_WQKV), (SRD_WO, KA_WO), (SRD_C, KA_C), (SRD_WMOD, KA_WMOD), (SRD_WS, KA_WS)):
        load_ptr(A, srd, ka)
    wave_id(A, sW, vT0, vLANE)
    A(f"v_lshlrev_b32 {v(vL16)}, 4, {v(vLANE)}")
    for srd, sz in ((SRD_X, SZ_X), (SRD_WQKV, SZ_WQKV), (SRD_WO, SZ_WO), (SRD_C, SZ_C), (SRD_WMOD, SZ_WMOD), (SRD_WS, L.WS_USED)):
        srd_tail(A, srd, sz)
    A(f"s_and_b32 {s(sX)}, s2, 7")
    A(f"s_lshr_b32 {s(sSLOT)}, s2, 3")
    A(f"s_lshr_b32 {s(sT0)}, {s(sX)}, 2")
    A(f"s_add_u32 {s(sT0)}, {s(sT0)}, 8")
    A(f"s_and_b32 {s(sT1)}, {s(sX)}, 3")
    A(f"s_mov_b32 {s(sWOID)}, 63")
    A(f"s_cmp_lt_u32 {s(sSLOT)}, 20")
    A("s_cbranch_scc0 k0_dec_notC")
    A(f"s_mov_b32 {s(sTYPE)}, 0")
    A(f"s_lshl_b32 {s(sT2)}, {s(sT1)}, 2")
    A(f"s_add_u32 {s(sT2)}, {s(sT2)}, {s(sSLOT)}")
    A(f"s_sub_u32 {s(sT2)}, {s(sT2)}, 16")
    A(f"s_cmp_lt_u32 {s(sSLOT)}, 16")
    A(f"s_cselect_b32 {s(sKB)}, {s(sX)}, {s(sT0)}")
    A(f"s_cselect_b32 {s(sHP)}, {s(sSLOT)}, {s(sT2)}")
    A(f"s_lshl_b32 {s(sCOL)}, {s(sKB)}, 7")
    A(f"s_add_u32 {s(sCOL)}, {s(sCOL)}, 1280")
    A("s_branch k0_dec_done")
    A.label("k0_dec_notC", pad=False)
    A(f"s_cmp_lt_u32 {s(sSLOT)}, 25")
    A("s_cbranch_scc0 k0_dec_notD")
    A(f"s_mov_b32 {s(sTYPE)}, 1")
    A(f"s_sub_u32 {s(sT2)}, {s(sSLOT)}, 20")
    A(f"s_cmp_lt_u32 {s(sSLOT)}, 24")
    A(f"s_cselect_b32 {s(sKB)}, {s(sX)}, {s(sT0)}")
    A(f"s_cselect_b32 {s(sHP)}, {s(sT2)}, {s(sT1)}")
    A(f"s_lshl_b32 {s(sCOL)}, {s(sKB)}, 7")
    A("s_branch k0_dec_done")
    A.label("k0_dec_notD", pad=False)
    A(f"s_cmp_lt_u32 {s(sSLOT)}, 30")
    A("s_cbranch_scc0 k0_dec_none")
    A(f"s_mov_b32 {s(sTYPE)}, 2")
    A(f"s_mul_i32 {s(sWOID)}, {s(sX)}, 5")
    A(f"s_add_u32 {s(sWOID)}, {s(sWOID)}, {s(sSLOT)}")
    A(f"s_sub_u32 {s(sWOID)}, {s(sWOID)}, 25")
    A(f"s_lshl_b32 {s(sCOL)}, {s(sWOID)}, 7")
    A(f"s_add_u32 {s(sCOL)}, {s(sCOL)}, 2560")
    A("s_branch k0_dec_done")
    A.label("k0_dec_none", pad=False)
    A(f"s_mov_b32 {s(sTYPE)}, 3")
    A(f"s_lshl_b32 {s(sWOID)}, {s(sX)}, 1")
    A(f"s_add_u32 {s(sWOID)}, {s(sWOID)}, {s(sSLOT)}")
    A(f"s_add_u32 {s(sWOID)}, {s(sWOID)}, 10")
    A.label("k0_dec_done", pad=False)
    A("s_waitcnt lgkmcnt(0)")
    A(f"s_cmp_lt_u32 {s(sW)}, 2")
    A("s_cbranch_scc0 k0_early_silu")
    xhat_loads(A)
    A("s_branch k0_early_done")
    A.label("k0_early_silu", pad=False)
    silu_job(A)
    A.label("k0_early_done", pad=False)
    A(f"s_cmp_eq_u32 {s(sTYPE)}, 3")
    A("s_cbranch_scc1 k0_dma_none")
    strip_dma(A)
    A(f"s_cmp_eq_u32 {s(sTYPE)}, 1")
    A("s_cbranch_scc1 k0_dma_D")
    A(f"s_cmp_eq_u32 {s(sTYPE)}, 2")
    A("s_cbranch_scc1 k0_dma_B")
    chunk_dma_C(A)
    A("s_waitcnt vmcnt(24)")
    A("s_branch k0_dma_done")
    A.label("k0_dma_D", pad=False)
    chunk_dma_D(A)
    A("s_waitcnt vmcnt(36)")
    A("s_branch k0_dma_done")
    A.label("k0_dma_B", pad=False)
    chunk_dma_WO(A)
    A("s_waitcnt vmcnt(24)")
    A("s_branch k0_dma_done")
    A.label("k0_dma_none", pad=False)
    A(f"s_cmp_lt_u32 {s(sWOID)}, 50")
    A("s_cbranch_scc0 k0_dma_none2")
    chunk_dma_WO(A)
    A("s_waitcnt vmcnt(4)")
    A("s_branch k0_dma_done")
    A.label("k0_dma_none2", pad=False)
    A("s_waitcnt vmcnt(0)")
    A.label("k0_dma_done")
    A(f"s_cmp_lt_u32 {s(sW)}, 2")
    A("s_cbranch_scc0 k0_job_silu")
    xhat_compute(A)
    A("s_waitcnt vmcnt(5)")
    A("s_branch k0_job_done")
    A.label("k0_job_silu")
    silu_compute(A)
    A("s_cmp_eq_u32 s2, 0")
    A("s_cbranch_scc0 k0_job_silu2")
    pad_zero(A)
    A.label("k0_job_silu2", pad=False)
    A("s_waitcnt vmcnt(0) lgkmcnt(0)")
    A.label("k0_job_done")
    A("s_barrier")
    A(f"s_cmp_eq_u32 {s(sTYPE)}, 3")
    A("s_cbranch_scc1 k0_tail_none")
    gemv(A)
    A(f"s_cmp_eq_u32 {s(sTYPE)}, 1")
    A("s_cbranch_scc1 k0_tail_D")
    A(f"s_cmp_eq_u32 {s(sTYPE)}, 2")
    A("s_cbranch_scc1 k0_tail_B")
    tail_C(A)
    A("s_branch k0_end")
    A.label("k0_tail_D")
    tail_D(A)
    A("s_branch k0_end")
    A.label("k0_tail_B")
    tail_B(A)
    A.label("k0_tail_none")
    A(f"v_lshrrev_b32 {v(vG16)}, 4, {v(vLANE)}")
    A(f"v_lshlrev_b32 {v(vG16)}, 4, {v(vG16)}")
    A(f"s_cmp_lt_u32 {s(sWOID)}, 50")
    A("s_cbranch_scc0 k0_end")
    repack_WO(A)
    A.label("k0_end", pad=False)
    A("s_endpgm")
    return dict(name=NAME, grid=256, lds=LDS, vgpr=128, agpr=0)
```

```python
from common import *
from core import Core
from k0 import chunk128_dma, exec_all

NAME = "k1_qkv_attn_kernel"
R = 12
RING = 0
HALO = R * 8192
SIDE = HALO + 20 * 1024
LDS = SIDE + 16384
QSTR = 528

SRD_WS, SRD_SRC = 8, 12
sWU = 16
sW, sMB, sHP = 32, 33, 34
sMAIN, sHALO, sM0M, sM0H, sP = 35, 36, 37, 38, 39
sT0, sT1, sT2, sT3, sT4 = 40, 41, 42, 43, 44
sSRC, sSM0, sUTL, sDST, sUTS = 45, 46, 47, 48, 49
sMASK = 50
sOF = 64
vLANE, vL16, vL16H, vT0, vT1, vT2, vT3 = 1, 2, 3, 4, 5, 6, 7
vCHK, vUT, vTRA, vTRB, vG16 = 8, 9, 10, 11, 12
vACC = 16
vS = 88
vT1V = 160
vUTF = 168
vUTR = 184
vSF = 216
vUACC = 232


def acc(p, f):
    return vACC + (p * 9 + f) * 4


class K1Core(Core):
    def stage_loads(self, ks):
        A, vq = self.A, self.vq
        out = []
        tag = ("st", ks)
        if ks % 4 == 0:
            def halo():
                A(f"s_add_u32 m0, {s(sM0H)}, {ks * 1024}")
                A(f"s_add_u32 {s(sT0)}, {s(sHALO)}, {ks * 129 * 1024}")
                vq.issue(f"buffer_load_dwordx4 {v(vL16)}, {s(SRD_WS, 4)}, {s(sT0)} offen lds", tag)
            out.append(halo)

        def main0():
            A(f"s_add_u32 m0, {s(sM0M)}, {(ks % R) * 8192}")
            A(f"s_add_u32 {s(sT0)}, {s(sMAIN)}, {ks * 129 * 1024}")
            vq.issue(f"buffer_load_dwordx4 {v(vL16)}, {s(SRD_WS, 4)}, {s(sT0)} offen lds", tag)

        def main1():
            vq.issue(f"buffer_load_dwordx4 {v(vL16)}, {s(SRD_WS, 4)}, {s(sT0)} offen offset:1024 lds", tag)

        def p0():
            A(f"s_add_u32 {s(sT1)}, {s(sP)}, {ks * 8192}")
            vq.issue(f"buffer_load_dwordx4 {a((ks * 2) * 4, 4)}, {v(vL16)}, {s(SRD_WS, 4)}, {s(sT1)} offen", tag)

        def p1():
            vq.issue(f"buffer_load_dwordx4 {a((ks * 2 + 1) * 4, 4)}, {v(vL16)}, {s(SRD_WS, 4)}, {s(sT1)} offen offset:1024", tag)
        out += [main0, main1, p0, p1]
        return out

    def step_reads(self, ks):
        out = []
        for f in range(9):
            addr = HALO + ks * 1024 if f == 0 else RING + (ks % R) * 8192 + (f - 1) * 1024
            reg, off = (vL16, addr) if addr < 65536 else (vL16H, addr - 65536)
            out.append(f"ds_read_b128 {v(vS + (ks & 1) * 36 + 4 * f, 4)}, {v(reg)} offset:{off}")
        return out

    def step_mfmas(self, ks):
        out = []
        for f in range(9):
            for p in range(2):
                c = v(vT1V + 4 * p, 4) if ks == 0 else v(acc(p, f), 4)
                out.append(f"v_mfma_f32_16x16x32_bf16 {v(acc(p, f), 4)}, {a((ks * 2 + p) * 4, 4)}, {v(vS + (ks & 1) * 36 + 4 * f, 4)}, {c}")
        return out

    def extra_fill(self, ks):
        A, vq = self.A, self.vq
        if ks != 8:
            return []
        out = []
        for u in range(4):
            def dma(u=u):
                A(f"s_add_u32 m0, {s(sSM0)}, {u * 4096}")
                A(f"s_add_u32 {s(sT2)}, {s(sSRC)}, {u * 32 * 3072}")
                vq.issue(f"buffer_load_dwordx4 {v(vCHK)}, {s(SRD_SRC, 4)}, {s(sT2)} offen nt lds", ("side", 0))
            out.append(dma)
        for ks4 in range(4):
            for h in range(2):
                def ld(ks4=ks4, h=h):
                    vq.issue(f"buffer_load_dwordx4 {v(vUTR + 8 * ks4 + 4 * h, 4)}, {v(vUT)}, {s(SRD_WS, 4)}, {s(sUTL)} offen offset:{ks4 * 128 + h * 64}", ("side", 1))
                out.append(ld)
        return out


def side_setup(A):
    A(f"s_min_u32 {s(sT0)}, s2, 239")
    A(f"s_cmp_ge_u32 {s(sT0)}, 120")
    A(f"s_cselect_b32 {s(sT4)}, 1, 0")
    A(f"s_cselect_b32 {s(SRD_SRC)}, {s(sWU)}, {s(SRD_SRC)}")
    A(f"s_cselect_b32 {s(SRD_SRC + 1)}, {s(sWU + 1)}, {s(SRD_SRC + 1)}")
    A(f"s_mul_i32 {s(sT1)}, {s(sT4)}, 120")
    A(f"s_sub_u32 {s(sT0)}, {s(sT0)}, {s(sT1)}")
    A(f"s_mul_i32 {s(sT1)}, {s(sT0)}, 43")
    A(f"s_lshr_b32 {s(sT1)}, {s(sT1)}, 10")
    A(f"s_mul_i32 {s(sT2)}, {s(sT1)}, 24")
    A(f"s_sub_u32 {s(sT2)}, {s(sT0)}, {s(sT2)}")
    swz_src_chunk(A, vT0, vLANE, sW, vT1, sT3)
    A(f"v_lshrrev_b32 {v(vT1)}, 3, {v(vLANE)}")
    A(f"v_mul_u32_u24 {v(vCHK)}, 3072, {v(vT1)}")
    A(f"v_lshl_add_u32 {v(vCHK)}, {v(vT0)}, 4, {v(vCHK)}")
    A(f"s_lshl_b32 {s(sSRC)}, {s(sT1)}, 4")
    A(f"s_add_u32 {s(sSRC)}, {s(sSRC)}, {s(sW)}")
    A(f"s_mul_i32 {s(sSRC)}, {s(sSRC)}, {8 * 3072}")
    A(f"s_lshl_b32 {s(sT3)}, {s(sT2)}, 7")
    A(f"s_add_u32 {s(sSRC)}, {s(sSRC)}, {s(sT3)}")
    A("s_cmp_lt_u32 s2, 240")
    A(f"s_cselect_b32 {s(sSRC)}, {s(sSRC)}, 0x40000000")
    A(f"s_lshl_b32 {s(sSM0)}, {s(sW)}, 10")
    A(f"s_add_u32 {s(sSM0)}, {s(sSM0)}, {SIDE}")
    A(f"v_and_b32 {v(vT0)}, 1, {v(vLANE)}")
    A(f"v_mul_u32_u24 {v(vT0)}, 2560, {v(vT0)}")
    A(f"v_sub_u32 {v(vUT)}, 5120, {v(vT0)}")
    A(f"v_add_u32 {v(vUT)}, {v(vUT)}, {v(vG16)}")
    A(f"s_lshl_b32 {s(sUTL)}, {s(sT1)}, 9")
    A(f"s_add_u32 {s(sUTL)}, {s(sUTL)}, {L.MOD}")
    A(f"s_lshl_b32 {s(sT2)}, {s(sT2)}, 2")
    A(f"s_add_u32 {s(sT2)}, {s(sT2)}, {s(sW)}")
    A(f"s_mul_i32 {s(sT0)}, {s(sT2)}, 43")
    A(f"s_lshr_b32 {s(sT0)}, {s(sT0)}, 8")
    A(f"s_mul_i32 {s(sT3)}, {s(sT0)}, 6")
    A(f"s_sub_u32 {s(sT3)}, {s(sT2)}, {s(sT3)}")
    A(f"s_mul_i32 {s(sT0)}, {s(sT0)}, 20")
    A(f"s_lshl_b32 {s(sDST)}, {s(sT1)}, 2")
    A(f"s_add_u32 {s(sT0)}, {s(sT0)}, {s(sDST)}")
    A(f"s_mul_i32 {s(sT0)}, {s(sT0)}, 12")
    A(f"s_add_u32 {s(sT0)}, {s(sT0)}, {s(sT3)}")
    A(f"s_mul_i32 {s(sT3)}, {s(sT4)}, 6")
    A(f"s_add_u32 {s(sT0)}, {s(sT0)}, {s(sT3)}")
    A(f"s_lshl_b32 {s(sT0)}, {s(sT0)}, 10")
    A(f"s_add_u32 {s(sDST)}, {s(sT0)}, {L.WGU}")
    A(f"s_mul_i32 {s(sT0)}, {s(sT1)}, {2 * 3072 * 4}")
    A(f"s_mul_i32 {s(sT3)}, {s(sT4)}, {1536 * 4}")
    A(f"s_add_u32 {s(sT0)}, {s(sT0)}, {s(sT3)}")
    A(f"s_lshl_b32 {s(sT3)}, {s(sT2)}, 6")
    A(f"s_add_u32 {s(sT0)}, {s(sT0)}, {s(sT3)}")
    A(f"s_add_u32 {s(sUTS)}, {s(sT0)}, {L.UT2}")
    tr_addr(A, vTRA, vLANE, 0, "split", sW, vT0, vT1, vT2, sT0)
    tr_addr(A, vTRB, vLANE, 1, "split", sW, vT0, vT1, vT2, sT0)


def side_finish(A, vq):
    vq.wait(lambda t: t[0] == "side")
    A("s_barrier")
    A("s_cmp_lt_u32 s2, 240")
    A("s_cbranch_scc0 k1_side_done")
    for ks in range(4):
        A(f"ds_read_b64_tr_b16 {v(vSF + 4 * ks, 2)}, {v(vTRA)} offset:{ks * 4096}")
        A(f"ds_read_b64_tr_b16 {v(vSF + 4 * ks + 2, 2)}, {v(vTRB)} offset:{ks * 4096}")
    for ks in range(4):
        for q in range(4):
            A(f"v_cvt_pk_bf16_f32 {v(vUTF + 4 * ks + q)}, {v(vUTR + 8 * ks + 2 * q)}, {v(vUTR + 8 * ks + 2 * q + 1)}")
    for ks in range(4):
        A(f"s_waitcnt lgkmcnt({6 - 2 * ks})")
        vq.issue(f"buffer_store_dwordx4 {v(vSF + 4 * ks, 4)}, {v(vL16)}, {s(SRD_WS, 4)}, {s(sDST)} offen", ("sst", ks))
        if ks < 3:
            A(f"s_add_u32 {s(sDST)}, {s(sDST)}, {12 * 1024}")
        c = v(vUACC, 4) if ks else "0"
        A(f"v_mfma_f32_16x16x32_bf16 {v(vUACC, 4)}, {v(vSF + 4 * ks, 4)}, {v(vUTF + 4 * ks, 4)}, {c}")
    A(f"v_and_b32 {v(vT0)}, 1, {v(vLANE)}")
    A(f"v_mul_u32_u24 {v(vT0)}, {3072 * 4}, {v(vT0)}")
    A(f"v_add_u32 {v(vT0)}, {v(vT0)}, {v(vG16)}")
    A("s_mov_b32 exec_lo, 0x00030003")
    A("s_mov_b32 exec_hi, 0x00030003")
    vq.issue(f"buffer_store_dwordx4 {v(vUACC, 4)}, {v(vT0)}, {s(SRD_WS, 4)}, {s(sUTS)} offen", ("sst", 4))
    exec_all(A)
    A.label("k1_side_done")


def attention(A, vq):
    vWR, vWR2, vRD, vTOK, vOO = vT0, vT1, vT2, vT3, vCHK
    A(f"v_and_b32 {v(vWR)}, 15, {v(vLANE)}")
    A(f"v_mul_u32_u24 {v(vWR)}, {QSTR}, {v(vWR)}")
    A(f"v_add_u32 {v(vWR)}, {v(vWR)}, {v(vG16)}")
    A(f"s_lshl_b32 {s(sT0)}, {s(sW)}, 7")
    A(f"v_add_u32 {v(vWR)}, {s(sT0)}, {v(vWR)}")
    A(f"v_add_u32 {v(vWR2)}, {4 * 16 * QSTR}, {v(vWR)}")
    A(f"s_and_b32 {s(sT0)}, {s(sW)}, 1")
    A(f"s_lshl_b32 {s(sT0)}, {s(sT0)}, 6")
    A(f"v_add_u32 {v(vTOK)}, {s(sT0)}, {v(vLANE)}")
    A(f"v_add_u32 {v(vRD)}, 2, {v(vTOK)}")
    A(f"v_mul_u32_u24 {v(vRD)}, {QSTR}, {v(vRD)}")
    A(f"s_lshr_b32 {s(sT1)}, {s(sW)}, 1")
    A(f"s_mul_i32 {s(sT2)}, {s(sT1)}, 80")
    A(f"v_add_u32 {v(vRD)}, {s(sT2)}, {v(vRD)}")
    A(f"v_lshrrev_b32 {v(vOO)}, 4, {v(vTOK)}")
    A(f"v_mul_u32_u24 {v(vOO)}, 20480, {v(vOO)}")
    A(f"v_and_b32 {v(vTRA)}, 15, {v(vTOK)}")
    A(f"v_lshl_add_u32 {v(vOO)}, {v(vTRA)}, 4, {v(vOO)}")
    A(f"s_mul_i32 {s(sT2)}, {s(sHP)}, 10")
    A(f"s_mul_i32 {s(sT1)}, {s(sT1)}, 5")
    A(f"s_add_u32 {s(sT2)}, {s(sT2)}, {s(sT1)}")
    A(f"s_mul_i32 {s(sT3)}, {s(sMB)}, {8 * 20480}")
    A(f"s_add_u32 {s(sT3)}, {s(sT3)}, {L.OF}")
    for qd in range(5):
        A(f"s_add_u32 {s(sT0)}, {s(sT2)}, {qd}")
        A(f"s_lshr_b32 {s(sT1)}, {s(sT0)}, 1")
        A(f"s_lshl_b32 {s(sT1)}, {s(sT1)}, 8")
        A(f"s_and_b32 {s(sT0)}, {s(sT0)}, 1")
        A(f"s_lshl_b32 {s(sT0)}, {s(sT0)}, 3")
        A(f"s_add_u32 {s(sT0)}, {s(sT0)}, {s(sT1)}")
        A(f"s_add_u32 {s(sOF + qd)}, {s(sT0)}, {s(sT3)}")
    A(f"s_lshl_b32 {s(sT0)}, {s(sMB)}, 7")
    A(f"v_add_u32 {v(vTOK)}, {s(sT0)}, {v(vTOK)}")
    for w8 in range(1, 8):
        A(f"v_cmp_le_u32 {s(sMASK + 2 * (w8 - 1), 2)}, {2 * w8}, {v(vTOK)}")
    for f in range(9):
        for p in range(2):
            reg, off = (vWR, f * 16 * QSTR + p * 64) if f < 4 else (vWR2, (f - 4) * 16 * QSTR + p * 64)
            A(f"ds_write_b128 {v(reg)}, {v(acc(p, f), 4)} offset:{off}")
    A("s_waitcnt lgkmcnt(0)")
    A("s_barrier")
    q = 16
    kb = [36, 56, 76]
    lg = 96
    o = 112
    e = 132
    vM, vSUM = 148, 150
    lq = LgQ(A)

    def rd_row(dst, off, tag):
        for c in range(5):
            lq.issue(f"ds_read_b128 {v(dst + 4 * c, 4)}, {v(vRD)} offset:{off + 16 * c}", tag)
    koff = lambda w8: (14 - 2 * w8) * QSTR + 160
    voff = lambda w8: (14 - 2 * w8) * QSTR + 320
    rd_row(q, 14 * QSTR, "q")
    rd_row(kb[0], koff(0), ("k", 0))
    rd_row(kb[1], koff(1), ("k", 1))
    for w8 in range(8):
        lq.wait(lambda t: t == "q" or (t[0] == "k" and t[1] <= w8))
        if w8 + 2 < 8:
            rd_row(kb[(w8 + 2) % 3], koff(w8 + 2), ("k", w8 + 2))
        elif w8 + 2 - 8 < 2:
            rd_row(kb[(w8 + 2) % 3], voff(w8 + 2 - 8), ("v", w8 + 2 - 8))
        k = kb[w8 % 3]
        L0 = lg + 2 * w8
        A(f"v_pk_mul_f32 {v(L0, 2)}, {v(q, 2)}, {v(k, 2)}")
        A(f"v_pk_mul_f32 {v(vM, 2)}, {v(q + 2, 2)}, {v(k + 2, 2)}")
        for c in range(2, 10, 2):
            A(f"v_pk_fma_f32 {v(L0, 2)}, {v(q + 2 * c, 2)}, {v(k + 2 * c, 2)}, {v(L0, 2)}")
            A(f"v_pk_fma_f32 {v(vM, 2)}, {v(q + 2 * c + 2, 2)}, {v(k + 2 * c + 2, 2)}, {v(vM, 2)}")
        A(f"v_pk_add_f32 {v(L0, 2)}, {v(L0, 2)}, {v(vM, 2)}")
        A(f"v_add_f32 {v(L0)}, {v(L0)}, {v(L0 + 1)}")
    A(f"s_cmp_lg_u32 {s(sMB)}, 0")
    A("s_cbranch_scc1 k1_nomask")
    A(f"v_mov_b32 {v(vM)}, {hexf(-1e30)}")
    for w8 in range(1, 8):
        A(f"v_cndmask_b32 {v(lg + 2 * w8)}, {v(vM)}, {v(lg + 2 * w8)}, {s(sMASK + 2 * (w8 - 1), 2)}")
    A.label("k1_nomask", pad=False)
    A("s_nop 1")
    l = lambda w8: lg + 2 * w8
    A(f"v_max3_f32 {v(vM)}, {v(l(0))}, {v(l(1))}, {v(l(2))}")
    A(f"v_max3_f32 {v(vM)}, {v(vM)}, {v(l(3))}, {v(l(4))}")
    A(f"v_max3_f32 {v(vM)}, {v(vM)}, {v(l(5))}, {v(l(6))}")
    A(f"v_max_f32 {v(vM)}, {v(vM)}, {v(l(7))}")
    cs = 20 ** -0.5 * LOG2E
    A(f"s_mov_b32 {s(sT0)}, {hexf(cs)}")
    A(f"v_mul_f32 {v(vM)}, {hexf(-cs)}, {v(vM)}")
    for w8 in range(8):
        A(f"v_fma_f32 {v(l(w8))}, {v(l(w8))}, {s(sT0)}, {v(vM)}")
    for w8 in range(8):
        A(f"v_exp_f32 {v(l(w8))}, {v(l(w8))}")
    A(f"v_add_f32 {v(vSUM)}, {v(l(0))}, {v(l(1))}")
    A(f"v_add_f32 {v(vSUM + 1)}, {v(l(2))}, {v(l(3))}")
    A(f"v_add_f32 {v(vM)}, {v(l(4))}, {v(l(5))}")
    A(f"v_add_f32 {v(vM + 1)}, {v(l(6))}, {v(l(7))}")
    A(f"v_pk_add_f32 {v(vSUM, 2)}, {v(vSUM, 2)}, {v(vM, 2)}")
    A(f"v_add_f32 {v(vSUM)}, {v(vSUM)}, {v(vSUM + 1)}")
    A(f"v_rcp_f32 {v(vSUM)}, {v(vSUM)}")
    for w8 in range(8):
        lq.wait(lambda t: t[0] == "v" and t[1] <= w8)
        if w8 + 2 < 8:
            rd_row(kb[(8 + w8 + 2) % 3], voff(w8 + 2), ("v", w8 + 2))
        vv = kb[(8 + w8) % 3]
        for c in range(10):
            if w8 == 0:
                A(f"v_pk_mul_f32 {v(o + 2 * c, 2)}, {v(vv + 2 * c, 2)}, {v(l(w8), 2)} op_sel_hi:[1,0]")
            else:
                A(f"v_pk_fma_f32 {v(o + 2 * c, 2)}, {v(vv + 2 * c, 2)}, {v(l(w8), 2)}, {v(o + 2 * c, 2)} op_sel_hi:[1,0,1]")
    for c in range(10):
        A(f"v_pk_mul_f32 {v(o + 2 * c, 2)}, {v(o + 2 * c, 2)}, {v(vSUM, 2)} op_sel_hi:[1,0]")
    for c in range(10):
        A(f"v_cvt_pk_bf16_f32 {v(q + c)}, {v(o + 2 * c)}, {v(o + 2 * c + 1)}")
    for qd in range(5):
        vq.issue(f"buffer_store_dwordx2 {v(q + 2 * qd, 2)}, {v(vOO)}, {s(SRD_WS, 4)}, {s(sOF + qd)} offen", ("o", qd))


def gen(A):
    kernel_head(A, NAME)
    entry(A, 256, "k1_end")
    load_ptr(A, SRD_WS, KA_WS)
    load_ptr(A, SRD_SRC, KA_WG)
    load_ptr(A, sWU, KA_WU)
    wave_id(A, sW, vT0, vLANE)
    A(f"v_lshlrev_b32 {v(vL16)}, 4, {v(vLANE)}")
    A(f"v_add_u32 {v(vL16H)}, 0x10000, {v(vL16)}")
    A(f"v_lshrrev_b32 {v(vG16)}, 4, {v(vLANE)}")
    A(f"v_lshlrev_b32 {v(vG16)}, 4, {v(vG16)}")
    srd_tail(A, SRD_WS, L.WS_USED)
    srd_tail(A, SRD_SRC, SZ_WG)
    A(f"s_and_b32 {s(sT0)}, s2, 7")
    A(f"s_lshr_b32 {s(sT1)}, s2, 3")
    A(f"s_lshr_b32 {s(sMB)}, {s(sT0)}, 1")
    A(f"s_lshl_b32 {s(sMB)}, {s(sMB)}, 2")
    A(f"s_lshr_b32 {s(sT2)}, {s(sT1)}, 3")
    A(f"s_add_u32 {s(sMB)}, {s(sMB)}, {s(sT2)}")
    A(f"s_and_b32 {s(sHP)}, {s(sT0)}, 1")
    A(f"s_lshl_b32 {s(sHP)}, {s(sHP)}, 3")
    A(f"s_and_b32 {s(sT2)}, {s(sT1)}, 7")
    A(f"s_add_u32 {s(sHP)}, {s(sHP)}, {s(sT2)}")
    A(f"s_lshl_b32 {s(sT0)}, {s(sMB)}, 3")
    A(f"s_lshl_b32 {s(sT1)}, {s(sW)}, 1")
    A(f"s_add_u32 {s(sMAIN)}, {s(sT0)}, {s(sT1)}")
    A(f"s_add_u32 {s(sMAIN)}, {s(sMAIN)}, 1")
    A(f"s_lshl_b32 {s(sMAIN)}, {s(sMAIN)}, 10")
    A(f"s_mul_i32 {s(sHALO)}, {s(sW)}, 129")
    A(f"s_add_u32 {s(sHALO)}, {s(sHALO)}, {s(sT0)}")
    A(f"s_lshl_b32 {s(sHALO)}, {s(sHALO)}, 10")
    if L.XH:
        A(f"s_add_u32 {s(sMAIN)}, {s(sMAIN)}, {L.XH}")
        A(f"s_add_u32 {s(sHALO)}, {s(sHALO)}, {L.XH}")
    A(f"s_lshl_b32 {s(sM0M)}, {s(sW)}, 11")
    if RING:
        A(f"s_add_u32 {s(sM0M)}, {s(sM0M)}, {RING}")
    A(f"s_lshl_b32 {s(sM0H)}, {s(sW)}, 10")
    A(f"s_add_u32 {s(sM0H)}, {s(sM0H)}, {HALO}")
    A(f"s_mul_i32 {s(sP)}, {s(sHP)}, 160")
    A(f"s_add_u32 {s(sP)}, {s(sP)}, {s(sT1)}")
    A(f"s_lshl_b32 {s(sP)}, {s(sP)}, 10")
    A(f"s_add_u32 {s(sP)}, {s(sP)}, {L.WQ}")
    A(f"v_and_b32 {v(vT0)}, 15, {v(vLANE)}")
    A(f"v_lshlrev_b32 {v(vT1)}, 13, {v(vT0)}")
    A(f"v_add_u32 {v(vT1)}, {v(vT1)}, {v(vG16)}")
    A(f"v_mov_b32 {v(vT2)}, 0x40000000")
    A(f"v_cmp_gt_u32 vcc, 10, {v(vT0)}")
    A(f"v_cndmask_b32 {v(vT1)}, {v(vT2)}, {v(vT1)}, vcc")
    A(f"s_lshl_b32 {s(sT0)}, {s(sHP)}, 9")
    A(f"s_lshl_b32 {s(sT1)}, {s(sW)}, 7")
    A(f"s_add_u32 {s(sT0)}, {s(sT0)}, {s(sT1)}")
    A(f"s_add_u32 {s(sT0)}, {s(sT0)}, {L.T1}")
    A("s_waitcnt lgkmcnt(0)")
    vq = VmQ(A)
    for p in range(2):
        vq.issue(f"buffer_load_dwordx4 {v(vT1V + 4 * p, 4)}, {v(vT1)}, {s(SRD_WS, 4)}, {s(sT0)} offen offset:{64 * p}", ("t1", p))
    core = K1Core(A, vq, 20, 1, R)
    core.prologue_loads()
    side_setup(A)
    A(f"v_add_u32 {v(vTRA)}, {SIDE}, {v(vTRA)}")
    A(f"v_add_u32 {v(vTRB)}, {SIDE}, {v(vTRB)}")
    vq.wait(lambda t: t[0] == "t1")
    for n in (8, 4, 2, 1):
        for r in range(8):
            A(f"v_add_f32_dpp {v(vT1V + r)}, {v(vT1V + r)}, {v(vT1V + r)} row_ror:{n} row_mask:0xf bank_mask:0xf")
    core.run()
    side_finish(A, vq)
    attention(A, vq)
    A.label("k1_end", pad=False)
    A("s_endpgm")
    return dict(name=NAME, grid=256, lds=LDS, vgpr=240, agpr=160)
```

```python
from common import *
from core import Core
from k0 import exec_all

SRD_WS, SRD_X, SRD_SRC = 8, 12, 16
sW, sMB, sJ = 32, 33, 34
sS, sM0, sP = 35, 36, 37
sT0, sT1, sT2, sT3, sT4 = 40, 41, 42, 43, 44
sSRC, sSM0, sDST = 45, 46, 47
sO = 50
vLANE, vL16, vL16H, vT0, vT1, vT2, vT3 = 1, 2, 3, 4, 5, 6, 7
vCHK, vG16, vTRA, vTRB, vXO, vL8 = 8, 9, 10, 11, 12, 13
vACC = 16
vS = 40
vXR = 120
vGA = 132
vC1 = 152
vW = 172


class WCore(Core):
    def __init__(self, A, vq, KS, R):
        super().__init__(A, vq, KS // 2, 2, R)
        self.KS = KS

    def stage_loads(self, st):
        A, vq, R = self.A, self.vq, self.R
        tag = ("st", st)
        out = []

        def s0():
            A(f"s_add_u32 m0, {s(sM0)}, {(st % R) * 20480}")
            A(f"s_add_u32 {s(sT0)}, {s(sS)}, {st * 20480}")
            vq.issue(f"buffer_load_dwordx4 {v(vL16)}, {s(SRD_WS, 4)}, {s(sT0)} offen lds", tag)
        out.append(s0)
        for u in range(1, 4):
            out.append(lambda u=u: vq.issue(f"buffer_load_dwordx4 {v(vL16)}, {s(SRD_WS, 4)}, {s(sT0)} offen offset:{1024 * u} lds", tag))

        def s4():
            A(f"s_add_u32 m0, {s(sM0)}, {(st % R) * 20480 + 4096}")
            A(f"s_add_u32 {s(sT0)}, {s(sS)}, {st * 20480 + 4096}")
            vq.issue(f"buffer_load_dwordx4 {v(vL16)}, {s(SRD_WS, 4)}, {s(sT0)} offen lds", tag)
        out.append(s4)

        def p0():
            A(f"s_add_u32 {s(sT1)}, {s(sP)}, {st * 4096}")
            vq.issue(f"buffer_load_dwordx4 {a(st * 16, 4)}, {v(vL16)}, {s(SRD_WS, 4)}, {s(sT1)} offen", tag)
        out.append(p0)
        for u in range(1, 4):
            out.append(lambda u=u: vq.issue(f"buffer_load_dwordx4 {a(st * 16 + 4 * u, 4)}, {v(vL16)}, {s(SRD_WS, 4)}, {s(sT1)} offen offset:{1024 * u}", tag))
        return out

    def step_reads(self, k):
        out = []
        for kk in range(2):
            ks = 2 * k + kk
            st, w = divmod(ks, 4)
            for t in range(5):
                addr = (st % self.R) * 20480 + w * 5120 + t * 1024
                reg, off = (vL16, addr) if addr < 65536 else (vL16H, addr - 65536)
                out.append(f"ds_read_b128 {v(vS + (k & 1) * 40 + 20 * kk + 4 * t, 4)}, {v(reg)} offset:{off}")
        return out

    def step_mfmas(self, k):
        out = []
        for kk in range(2):
            ks = 2 * k + kk
            for t in range(5):
                c = "0" if ks == 0 else v(vACC + 4 * t, 4)
                out.append(f"v_mfma_f32_16x16x32_bf16 {v(vACC + 4 * t, 4)}, {v(vS + (k & 1) * 40 + 20 * kk + 4 * t, 4)}, {a(ks * 4, 4)}, {c}")
        return out


def prolog_common(A, KS, wbase, pbase):
    wave_id(A, sW, vT0, vLANE)
    A(f"v_lshlrev_b32 {v(vL16)}, 4, {v(vLANE)}")
    A(f"v_add_u32 {v(vL16H)}, 0x10000, {v(vL16)}")
    A(f"v_lshrrev_b32 {v(vG16)}, 4, {v(vLANE)}")
    A(f"v_lshlrev_b32 {v(vG16)}, 4, {v(vG16)}")
    A(f"v_lshlrev_b32 {v(vL8)}, 3, {v(vLANE)}")
    A(f"s_and_b32 {s(sT0)}, s2, 7")
    A(f"s_lshr_b32 {s(sT1)}, s2, 3")
    A(f"s_lshr_b32 {s(sMB)}, {s(sT0)}, 1")
    A(f"s_lshl_b32 {s(sMB)}, {s(sMB)}, 3")
    A(f"s_lshr_b32 {s(sT2)}, {s(sT1)}, 2")
    A(f"s_add_u32 {s(sMB)}, {s(sMB)}, {s(sT2)}")
    A(f"s_and_b32 {s(sJ)}, {s(sT0)}, 1")
    A(f"s_lshl_b32 {s(sJ)}, {s(sJ)}, 2")
    A(f"s_and_b32 {s(sT2)}, {s(sT1)}, 3")
    A(f"s_add_u32 {s(sJ)}, {s(sJ)}, {s(sT2)}")
    A(f"s_mul_i32 {s(sS)}, {s(sJ)}, {KS * 5120}")
    A(f"s_mul_i32 {s(sM0)}, {s(sW)}, 5120")
    A(f"s_add_u32 {s(sS)}, {s(sS)}, {s(sM0)}")
    A(f"s_add_u32 {s(sS)}, {s(sS)}, {wbase}")
    A(f"s_lshl_b32 {s(sP)}, {s(sMB)}, 2")
    A(f"s_add_u32 {s(sP)}, {s(sP)}, {s(sW)}")
    A(f"s_mul_i32 {s(sP)}, {s(sP)}, {KS * 1024}")
    A(f"s_add_u32 {s(sP)}, {s(sP)}, {pbase}")


def rowmajor_voff(A, vdst):
    A(f"v_and_b32 {v(vdst)}, 15, {v(vLANE)}")
    A(f"v_mul_u32_u24 {v(vdst)}, 1280, {v(vdst)}")
    A(f"v_lshrrev_b32 {v(vT0)}, 1, {v(vG16)}")
    A(f"v_add_u32 {v(vdst)}, {v(vdst)}, {v(vT0)}")


def rowmajor_soff(A, sdst):
    A(f"s_lshl_b32 {s(sdst)}, {s(sMB)}, 2")
    A(f"s_add_u32 {s(sdst)}, {s(sdst)}, {s(sW)}")
    A(f"s_mul_i32 {s(sdst)}, {s(sdst)}, {16 * 1280}")
    A(f"s_mul_i32 {s(sT3)}, {s(sJ)}, 160")
    A(f"s_add_u32 {s(sdst)}, {s(sdst)}, {s(sT3)}")


def x1_soff(A, sdst):
    A(f"s_lshl_b32 {s(sdst)}, {s(sMB)}, 3")
    A(f"s_add_u32 {s(sdst)}, {s(sdst)}, {s(sJ)}")
    A(f"s_lshl_b32 {s(sdst)}, {s(sdst)}, 2")
    A(f"s_add_u32 {s(sdst)}, {s(sdst)}, {s(sW)}")
    A(f"s_mul_i32 {s(sdst)}, {s(sdst)}, 2560")
    A(f"s_add_u32 {s(sdst)}, {s(sdst)}, {L.X1}")


def mod_loads(A, vq, dst, which, tag):
    A(f"s_mul_i32 {s(sT2)}, {s(sJ)}, 320")
    A(f"s_add_u32 {s(sT2)}, {s(sT2)}, {L.MOD + which * 2560}")
    for t in range(5):
        vq.issue(f"buffer_load_dwordx4 {v(dst + 4 * t, 4)}, {v(vG16)}, {s(SRD_WS, 4)}, {s(sT2)} offen offset:{64 * t}", tag)


def unpack4(A, dst, src):
    A(f"v_lshlrev_b32 {v(dst)}, 16, {v(src)}")
    A(f"v_and_b32 {v(dst + 1)}, 0xffff0000, {v(src)}")
    A(f"v_lshlrev_b32 {v(dst + 2)}, 16, {v(src + 1)}")
    A(f"v_and_b32 {v(dst + 3)}, 0xffff0000, {v(src + 1)}")


def xlane_sum_g(A, r, t):
    A(f"v_mov_b32 {v(t)}, {v(r)}")
    A(f"v_permlane32_swap_b32 {v(r)}, {v(t)}")
    A(f"v_add_f32 {v(r)}, {v(r)}, {v(t)}")
    A(f"v_mov_b32 {v(t)}, {v(r)}")
    A(f"v_permlane16_swap_b32 {v(r)}, {v(t)}")
    A(f"v_add_f32 {v(r)}, {v(r)}, {v(t)}")


K2_NAME = "k2_wo_kernel"
K2_SIDE = 5 * 20480
K2_LDS = K2_SIDE + 16384


def k2_side_setup(A):
    A(f"s_min_u32 {s(sT0)}, s2, 119")
    A(f"s_mul_i32 {s(sT1)}, {s(sT0)}, 205")
    A(f"s_lshr_b32 {s(sT1)}, {s(sT1)}, 11")
    A(f"s_mul_i32 {s(sT2)}, {s(sT1)}, 10")
    A(f"s_sub_u32 {s(sT2)}, {s(sT0)}, {s(sT2)}")
    swz_src_chunk(A, vT0, vLANE, sW, vT1, sT3)
    A(f"v_lshrrev_b32 {v(vT1)}, 3, {v(vLANE)}")
    A(f"v_mul_u32_u24 {v(vCHK)}, 1280, {v(vT1)}")
    A(f"v_lshl_add_u32 {v(vCHK)}, {v(vT0)}, 4, {v(vCHK)}")
    A(f"s_lshl_b32 {s(sSRC)}, {s(sT1)}, 4")
    A(f"s_add_u32 {s(sSRC)}, {s(sSRC)}, {s(sW)}")
    A(f"s_mul_i32 {s(sSRC)}, {s(sSRC)}, {8 * 1280}")
    A(f"s_lshl_b32 {s(sT3)}, {s(sT2)}, 7")
    A(f"s_add_u32 {s(sSRC)}, {s(sSRC)}, {s(sT3)}")
    A("s_cmp_lt_u32 s2, 120")
    A(f"s_cselect_b32 {s(sSRC)}, {s(sSRC)}, 0x40000000")
    A(f"s_lshl_b32 {s(sSM0)}, {s(sW)}, 10")
    A(f"s_add_u32 {s(sSM0)}, {s(sSM0)}, {K2_SIDE}")
    A(f"s_lshl_b32 {s(sT2)}, {s(sT2)}, 2")
    A(f"s_add_u32 {s(sT2)}, {s(sT2)}, {s(sW)}")
    A(f"s_mul_i32 {s(sT0)}, {s(sT2)}, 205")
    A(f"s_lshr_b32 {s(sT0)}, {s(sT0)}, 10")
    A(f"s_mul_i32 {s(sT3)}, {s(sT0)}, 5")
    A(f"s_sub_u32 {s(sT3)}, {s(sT2)}, {s(sT3)}")
    A(f"s_mul_i32 {s(sT0)}, {s(sT0)}, 48")
    A(f"s_lshl_b32 {s(sT1)}, {s(sT1)}, 2")
    A(f"s_add_u32 {s(sT0)}, {s(sT0)}, {s(sT1)}")
    A(f"s_mul_i32 {s(sT0)}, {s(sT0)}, 5")
    A(f"s_add_u32 {s(sT0)}, {s(sT0)}, {s(sT3)}")
    A(f"s_lshl_b32 {s(sT0)}, {s(sT0)}, 10")
    A(f"s_add_u32 {s(sDST)}, {s(sT0)}, {L.WD}")
    tr_addr(A, vTRA, vLANE, 0, "split", sW, vT0, vT1, vT2, sT0)
    tr_addr(A, vTRB, vLANE, 1, "split", sW, vT0, vT1, vT2, sT0)
    A(f"v_add_u32 {v(vTRA)}, {K2_SIDE}, {v(vTRA)}")
    A(f"v_add_u32 {v(vTRB)}, {K2_SIDE}, {v(vTRB)}")


class K2Core(WCore):
    def extra_fill(self, k):
        A, vq = self.A, self.vq
        out = []
        if k == 2:
            for u in range(4):
                def dma(u=u):
                    A(f"s_add_u32 m0, {s(sSM0)}, {u * 4096}")
                    A(f"s_add_u32 {s(sT2)}, {s(sSRC)}, {u * 32 * 1280}")
                    vq.issue(f"buffer_load_dwordx4 {v(vCHK)}, {s(SRD_SRC, 4)}, {s(sT2)} offen nt lds", ("side", 0))
                out.append(dma)
        return out


def gen_k2(A):
    kernel_head(A, K2_NAME)
    entry(A, 256, "k2_end")
    load_ptr(A, SRD_WS, KA_WS)
    load_ptr(A, SRD_X, KA_X)
    load_ptr(A, SRD_SRC, KA_WD)
    srd_tail(A, SRD_WS, L.WS_USED)
    srd_tail(A, SRD_X, SZ_X)
    srd_tail(A, SRD_SRC, SZ_WD)
    prolog_common(A, 20, L.WO, L.OF)
    rowmajor_voff(A, vXO)
    rowmajor_soff(A, sT4)
    A("s_waitcnt lgkmcnt(0)")
    vq = VmQ(A)
    core = K2Core(A, vq, 20, 5)
    core.prologue_loads()
    for t in range(5):
        vq.issue(f"buffer_load_dwordx2 {v(vXR + 2 * t, 2)}, {v(vXO)}, {s(SRD_X, 4)}, {s(sT4)} offen offset:{32 * t}", ("ep", 0))
    mod_loads(A, vq, vGA, 0, ("ep", 1))
    mod_loads(A, vq, vC1, 2, ("ep", 2))
    k2_side_setup(A)
    core.run()
    vq.wait(lambda t: t[0] == "ep")
    x1 = vW
    for t in range(5):
        unpack4(A, x1 + 4 * t, vXR + 2 * t)
    for t in range(5):
        for h in range(2):
            A(f"v_pk_fma_f32 {v(x1 + 4 * t + 2 * h, 2)}, {v(vGA + 4 * t + 2 * h, 2)}, {v(vACC + 4 * t + 2 * h, 2)}, {v(x1 + 4 * t + 2 * h, 2)}")
    x1_soff(A, sT0)
    pk = vXR
    for t in range(5):
        A(f"v_cvt_pk_bf16_f32 {v(pk + 2 * t)}, {v(x1 + 4 * t)}, {v(x1 + 4 * t + 1)}")
        A(f"v_cvt_pk_bf16_f32 {v(pk + 2 * t + 1)}, {v(x1 + 4 * t + 2)}, {v(x1 + 4 * t + 3)}")
    for t in range(5):
        vq.issue(f"buffer_store_dwordx2 {v(pk + 2 * t, 2)}, {v(vL8)}, {s(SRD_WS, 4)}, {s(sT0)} offen offset:{512 * t}", ("x1", t))
    xs = vACC
    pk2 = vGA
    for t in range(5):
        for h in range(2):
            A(f"v_pk_mul_f32 {v(xs + 4 * t + 2 * h, 2)}, {v(x1 + 4 * t + 2 * h, 2)}, {v(vC1 + 4 * t + 2 * h, 2)}")
    for t in range(5):
        A(f"v_cvt_pk_bf16_f32 {v(pk2 + 2 * t)}, {v(xs + 4 * t)}, {v(xs + 4 * t + 1)}")
        A(f"v_cvt_pk_bf16_f32 {v(pk2 + 2 * t + 1)}, {v(xs + 4 * t + 2)}, {v(xs + 4 * t + 3)}")
    A(f"s_lshl_b32 {s(sT1)}, {s(sMB)}, 2")
    A(f"s_add_u32 {s(sT1)}, {s(sT1)}, {s(sW)}")
    A(f"s_mul_i32 {s(sT1)}, {s(sT1)}, 20480")
    A(f"s_add_u32 {s(sT1)}, {s(sT1)}, {L.X1S}")
    A(f"s_mul_i32 {s(sT2)}, {s(sJ)}, 5")
    for t in range(5):
        A(f"s_add_u32 {s(sT3)}, {s(sT2)}, {t}")
        A(f"s_lshr_b32 {s(sT4)}, {s(sT3)}, 1")
        A(f"s_lshl_b32 {s(sT4)}, {s(sT4)}, 10")
        A(f"s_and_b32 {s(sT3)}, {s(sT3)}, 1")
        A(f"s_lshl_b32 {s(sT3)}, {s(sT3)}, 3")
        A(f"s_add_u32 {s(sT3)}, {s(sT3)}, {s(sT4)}")
        A(f"s_add_u32 {s(sO + t)}, {s(sT3)}, {s(sT1)}")
    for t in range(5):
        vq.issue(f"buffer_store_dwordx2 {v(pk2 + 2 * t, 2)}, {v(vL16)}, {s(SRD_WS, 4)}, {s(sO + t)} offen", ("x1s", t))
    sm = vC1
    A(f"v_pk_add_f32 {v(sm, 2)}, {v(x1, 2)}, {v(x1 + 2, 2)}")
    A(f"v_pk_add_f32 {v(sm + 2, 2)}, {v(x1 + 4, 2)}, {v(x1 + 6, 2)}")
    for c in range(4, 10, 2):
        A(f"v_pk_add_f32 {v(sm, 2)}, {v(sm, 2)}, {v(x1 + 2 * c, 2)}")
        A(f"v_pk_add_f32 {v(sm + 2, 2)}, {v(sm + 2, 2)}, {v(x1 + 2 * c + 2, 2)}")
    A(f"v_pk_add_f32 {v(sm, 2)}, {v(sm, 2)}, {v(sm + 2, 2)}")
    A(f"v_add_f32 {v(sm)}, {v(sm)}, {v(sm + 1)}")
    xlane_sum_g(A, sm, sm + 1)
    A(f"v_mul_f32 {v(sm)}, {hexf(1.0 / 80)}, {v(sm)}")
    A(f"v_sub_f32 {v(sm + 2)}, 0, {v(sm)}")
    for c in range(10):
        A(f"v_pk_add_f32 {v(x1 + 2 * c, 2)}, {v(x1 + 2 * c, 2)}, {v(sm + 2, 2)} op_sel_hi:[1,0]")
    A(f"v_pk_mul_f32 {v(sm + 4, 2)}, {v(x1, 2)}, {v(x1, 2)}")
    A(f"v_pk_mul_f32 {v(sm + 6, 2)}, {v(x1 + 2, 2)}, {v(x1 + 2, 2)}")
    for c in range(2, 10, 2):
        A(f"v_pk_fma_f32 {v(sm + 4, 2)}, {v(x1 + 2 * c, 2)}, {v(x1 + 2 * c, 2)}, {v(sm + 4, 2)}")
        A(f"v_pk_fma_f32 {v(sm + 6, 2)}, {v(x1 + 2 * c + 2, 2)}, {v(x1 + 2 * c + 2, 2)}, {v(sm + 6, 2)}")
    A(f"v_pk_add_f32 {v(sm + 4, 2)}, {v(sm + 4, 2)}, {v(sm + 6, 2)}")
    A(f"v_add_f32 {v(sm + 1)}, {v(sm + 4)}, {v(sm + 5)}")
    xlane_sum_g(A, sm + 1, sm + 2)
    A(f"v_and_b32 {v(vT0)}, 15, {v(vLANE)}")
    A(f"v_lshlrev_b32 {v(vT0)}, 6, {v(vT0)}")
    A(f"s_lshl_b32 {s(sT0)}, {s(sMB)}, 2")
    A(f"s_add_u32 {s(sT0)}, {s(sT0)}, {s(sW)}")
    A(f"s_lshl_b32 {s(sT0)}, {s(sT0)}, 10")
    A(f"s_lshl_b32 {s(sT1)}, {s(sJ)}, 3")
    A(f"s_add_u32 {s(sT0)}, {s(sT0)}, {s(sT1)}")
    A(f"s_add_u32 {s(sT0)}, {s(sT0)}, {L.ST2}")
    A("s_mov_b64 exec, 0xffff")
    vq.issue(f"buffer_store_dwordx2 {v(sm, 2)}, {v(vT0)}, {s(SRD_WS, 4)}, {s(sT0)} offen", ("st", 99))
    exec_all(A)
    A("s_cmp_lt_u32 s2, 120")
    A("s_cbranch_scc0 k2_end")
    vq.wait(lambda t: t[0] == "side")
    A("s_barrier")
    fr = vS
    for ks in range(4):
        A(f"ds_read_b64_tr_b16 {v(fr + 4 * ks, 2)}, {v(vTRA)} offset:{ks * 4096}")
        A(f"ds_read_b64_tr_b16 {v(fr + 4 * ks + 2, 2)}, {v(vTRB)} offset:{ks * 4096}")
    for ks in range(4):
        A(f"s_waitcnt lgkmcnt({6 - 2 * ks})")
        vq.issue(f"buffer_store_dwordx4 {v(fr + 4 * ks, 4)}, {v(vL16)}, {s(SRD_WS, 4)}, {s(sDST)} offen", ("sst", ks))
        if ks < 3:
            A(f"s_add_u32 {s(sDST)}, {s(sDST)}, 5120")
    A.label("k2_end", pad=False)
    A("s_endpgm")
    return dict(name=K2_NAME, grid=256, lds=K2_LDS, vgpr=200, agpr=80)


K4_NAME = "adaLN_cond__sliding_local_dilated__geglu_ffn__prompt_kernel"
K4_R = 6
K4_LDS = K4_R * 20480


def gen_k4(A):
    kernel_head(A, K4_NAME)
    entry(A, 256, "k4_end")
    load_ptr(A, SRD_WS, KA_WS)
    load_ptr(A, SRD_X, KA_OUT)
    srd_tail(A, SRD_WS, L.WS_USED)
    srd_tail(A, SRD_X, SZ_OUT)
    prolog_common(A, 48, L.WD, L.ACT)
    rowmajor_voff(A, vXO)
    x1_soff(A, sT4)
    A("s_waitcnt lgkmcnt(0)")
    vq = VmQ(A)
    for t in range(5):
        vq.issue(f"buffer_load_dwordx2 {v(vXR + 2 * t, 2)}, {v(vL8)}, {s(SRD_WS, 4)}, {s(sT4)} offen offset:{512 * t}", ("ep", 0))
    mod_loads(A, vq, vGA, 3, ("ep", 1))
    core = WCore(A, vq, 48, K4_R)
    core.R = 5
    core.prologue_loads()
    core.R = K4_R
    core_extra = core.stage_loads(5)
    core.extra_fill = lambda k: core_extra if k == 0 else []
    rowmajor_soff(A, sT4)
    core.run()
    vq.wait(lambda t: t[0] == "ep")
    x1 = vW
    for t in range(5):
        unpack4(A, x1 + 4 * t, vXR + 2 * t)
    for t in range(5):
        for h in range(2):
            A(f"v_pk_fma_f32 {v(x1 + 4 * t + 2 * h, 2)}, {v(vGA + 4 * t + 2 * h, 2)}, {v(vACC + 4 * t + 2 * h, 2)}, {v(x1 + 4 * t + 2 * h, 2)}")
    pk = vXR
    for t in range(5):
        A(f"v_cvt_pk_bf16_f32 {v(pk + 2 * t)}, {v(x1 + 4 * t)}, {v(x1 + 4 * t + 1)}")
        A(f"v_cvt_pk_bf16_f32 {v(pk + 2 * t + 1)}, {v(x1 + 4 * t + 2)}, {v(x1 + 4 * t + 3)}")
    for t in range(5):
        vq.issue(f"buffer_store_dwordx2 {v(pk + 2 * t, 2)}, {v(vXO)}, {s(SRD_X, 4)}, {s(sT4)} offen offset:{32 * t}", ("out", t))
    A.label("k4_end", pad=False)
    A("s_endpgm")
    return dict(name=K4_NAME, grid=256, lds=K4_LDS, vgpr=200, agpr=192)
```

```python
from common import *
from core import Core
from k2 import xlane_sum_g

NAME = "k3_geglu_kernel"
G, R = 2, 5
RING = 0
UT = R * G * 12288
LDS = UT + 1536

SRD_WS = 8
sW, sMB, sJ = 32, 33, 34
sS, sM0, sP0, sP1 = 35, 36, 37, 38
sT0, sT1, sT2, sT3 = 40, 41, 42, 43
vLANE, vL16, vL16H, vT0, vT1, vT2, vT3, vG16 = 1, 2, 3, 4, 5, 6, 7, 8
vACC = 16
vS = 112
vST = 208
vR = 216
vUTL = 224


def acc(p, t):
    return vACC + (p * 12 + t) * 4


class K3Core(Core):
    def stage_loads(self, st):
        A, vq = self.A, self.vq
        tag = ("st", st)
        out = []
        for kk in range(G):
            ks = st * G + kk

            def s0(ks=ks):
                A(f"s_add_u32 m0, {s(sM0)}, {RING + (ks % (R * G)) * 12288}")
                A(f"s_add_u32 {s(sT0)}, {s(sS)}, {ks * 12288}")
                vq.issue(f"buffer_load_dwordx4 {v(vL16)}, {s(SRD_WS, 4)}, {s(sT0)} offen lds", tag)
            out.append(s0)
            for u in (1, 2):
                out.append(lambda u=u: vq.issue(f"buffer_load_dwordx4 {v(vL16)}, {s(SRD_WS, 4)}, {s(sT0)} offen offset:{1024 * u} lds", tag))

            def p0(ks=ks):
                A(f"s_add_u32 {s(sT1)}, {s(sP0)}, {ks * 1024}")
                vq.issue(f"buffer_load_dwordx4 {a(ks * 8, 4)}, {v(vL16)}, {s(SRD_WS, 4)}, {s(sT1)} offen", tag)

            def p1(ks=ks):
                A(f"s_add_u32 {s(sT1)}, {s(sP1)}, {ks * 1024}")
                vq.issue(f"buffer_load_dwordx4 {a(ks * 8 + 4, 4)}, {v(vL16)}, {s(SRD_WS, 4)}, {s(sT1)} offen", tag)
            out += [p0, p1]
        return out

    def step_reads(self, ks):
        out = []
        for t in range(12):
            addr = RING + (ks % (R * G)) * 12288 + t * 1024
            reg, off = (vL16, addr) if addr < 65536 else (vL16H, addr - 65536)
            out.append(f"ds_read_b128 {v(vS + (ks & 1) * 48 + 4 * t, 4)}, {v(reg)} offset:{off}")
        return out

    def step_mfmas(self, ks):
        out = []
        for t in range(12):
            for p in range(2):
                c = "0" if ks == 0 else v(acc(p, t), 4)
                out.append(f"v_mfma_f32_16x16x32_bf16 {v(acc(p, t), 4)}, {v(vS + (ks & 1) * 48 + 4 * t, 4)}, {a(ks * 8 + 4 * p, 4)}, {c}")
        return out


def gen(A):
    kernel_head(A, NAME)
    entry(A, 256, "k3_end")
    load_ptr(A, SRD_WS, KA_WS)
    srd_tail(A, SRD_WS, L.WS_USED)
    wave_id(A, sW, vT0, vLANE)
    A(f"v_lshlrev_b32 {v(vL16)}, 4, {v(vLANE)}")
    A(f"v_add_u32 {v(vL16H)}, 0x10000, {v(vL16)}")
    A(f"v_lshrrev_b32 {v(vG16)}, 4, {v(vLANE)}")
    A(f"v_lshlrev_b32 {v(vG16)}, 4, {v(vG16)}")
    A(f"s_and_b32 {s(sT0)}, s2, 7")
    A(f"s_lshr_b32 {s(sT1)}, s2, 3")
    A(f"s_lshr_b32 {s(sMB)}, {s(sT0)}, 1")
    A(f"s_lshl_b32 {s(sMB)}, {s(sMB)}, 2")
    A(f"s_lshr_b32 {s(sT2)}, {s(sT1)}, 3")
    A(f"s_add_u32 {s(sMB)}, {s(sMB)}, {s(sT2)}")
    A(f"s_and_b32 {s(sJ)}, {s(sT0)}, 1")
    A(f"s_lshl_b32 {s(sJ)}, {s(sJ)}, 3")
    A(f"s_and_b32 {s(sT2)}, {s(sT1)}, 7")
    A(f"s_add_u32 {s(sJ)}, {s(sJ)}, {s(sT2)}")
    A(f"s_mul_i32 {s(sM0)}, {s(sW)}, 3072")
    A(f"s_mul_i32 {s(sS)}, {s(sJ)}, {20 * 12288}")
    A(f"s_add_u32 {s(sS)}, {s(sS)}, {s(sM0)}")
    A(f"s_add_u32 {s(sS)}, {s(sS)}, {L.WGU}")
    A(f"s_lshl_b32 {s(sT0)}, {s(sMB)}, 3")
    A(f"s_lshl_b32 {s(sT1)}, {s(sW)}, 1")
    A(f"s_add_u32 {s(sT0)}, {s(sT0)}, {s(sT1)}")
    A(f"s_mul_i32 {s(sP0)}, {s(sT0)}, 20480")
    A(f"s_add_u32 {s(sP0)}, {s(sP0)}, {L.X1S}")
    A(f"s_add_u32 {s(sP1)}, {s(sP0)}, 20480")
    A(f"s_lshl_b32 {s(sT2)}, {s(sT0)}, 10")
    A(f"s_add_u32 {s(sT2)}, {s(sT2)}, {L.ST2}")
    A(f"v_and_b32 {v(vT0)}, 15, {v(vLANE)}")
    A(f"v_lshl_add_u32 {v(vT0)}, {v(vT0)}, 6, {v(vG16)}")
    A(f"v_mul_u32_u24 {v(vT1)}, 43, v0")
    A(f"v_lshrrev_b32 {v(vT1)}, 10, {v(vT1)}")
    A(f"v_mul_u32_u24 {v(vT2)}, 24, {v(vT1)}")
    A(f"v_sub_u32 {v(vT2)}, v0, {v(vT2)}")
    A(f"v_mul_u32_u24 {v(vT1)}, {1536 * 4}, {v(vT1)}")
    A(f"v_lshl_add_u32 {v(vT1)}, {v(vT2)}, 4, {v(vT1)}")
    A(f"v_mov_b32 {v(vT2)}, 0x40000000")
    A(f"v_cmp_gt_u32 vcc, 96, v0")
    A(f"v_cndmask_b32 {v(vT1)}, {v(vT2)}, {v(vT1)}, vcc")
    A(f"s_mul_i32 {s(sT3)}, {s(sJ)}, 384")
    A(f"s_add_u32 {s(sT3)}, {s(sT3)}, {L.UT2}")
    A("s_waitcnt lgkmcnt(0)")
    vq = VmQ(A)
    for p in range(2):
        vq.issue(f"buffer_load_dwordx4 {v(vST + 4 * p, 4)}, {v(vT0)}, {s(SRD_WS, 4)}, {s(sT2)} offen offset:{1024 * p}", ("pre", 0))
    for kc in range(5):
        vq.issue(f"buffer_load_dwordx4 {v(vUTL + 4 * kc, 4)}, {v(vT1)}, {s(SRD_WS, 4)}, {s(sT3)} offen", ("pre", 1))
        if kc < 4:
            A(f"s_add_u32 {s(sT3)}, {s(sT3)}, {2 * 3072 * 4}")
    core = K3Core(A, vq, 20, G, R)
    core.prologue_loads()
    vq.wait(lambda t: t[0] == "pre")
    for kc in range(1, 5):
        for h in range(2):
            A(f"v_pk_add_f32 {v(vUTL + 2 * h, 2)}, {v(vUTL + 2 * h, 2)}, {v(vUTL + 4 * kc + 2 * h, 2)}")
    A(f"v_lshlrev_b32 {v(vT2)}, 4, v0")
    A("v_cmp_gt_u32 vcc, 96, v0")
    A(f"s_and_saveexec_b64 {s(sT0, 2)}, vcc")
    A(f"ds_write_b128 {v(vT2)}, {v(vUTL, 4)} offset:{UT}" if UT < 65536 else
      f"v_add_u32 {v(vT2)}, {UT}, {v(vT2)}\nds_write_b128 {v(vT2)}, {v(vUTL, 4)}")
    A(f"s_mov_b64 exec, {s(sT0, 2)}")
    for p in range(2):
        b = vST + 4 * p
        m, t0, t1 = vUTL + 4, vUTL + 5, vUTL + 6
        A(f"v_add_f32 {v(m)}, {v(b)}, {v(b + 2)}")
        xlane_sum_g(A, m, t0)
        A(f"v_mul_f32 {v(m)}, 0.125, {v(m)}" if False else f"v_mul_f32 {v(m)}, {hexf(0.125)}, {v(m)}")
        A(f"v_sub_f32 {v(t0)}, {v(b)}, {v(m)}")
        A(f"v_sub_f32 {v(t1)}, {v(b + 2)}, {v(m)}")
        A(f"v_mul_f32 {v(t0)}, {v(t0)}, {v(t0)}")
        A(f"v_fmac_f32 {v(t0)}, {v(t1)}, {v(t1)}")
        A(f"v_add_f32 {v(t1)}, {v(b + 1)}, {v(b + 3)}")
        A(f"v_fmac_f32 {v(t1)}, {hexf(80.0)}, {v(t0)}")
        xlane_sum_g(A, t1, t0)
        A(f"v_mov_b32 {v(t0)}, {hexf(1e-5)}")
        A(f"v_fmac_f32 {v(t0)}, {hexf(1.0 / 640)}, {v(t1)}")
        A(f"v_rsq_f32 {v(vR + 2 * p)}, {v(t0)}")
        A(f"v_mul_f32 {v(vR + 4 + 2 * p)}, {v(m)}, {v(vR + 2 * p)}")
        A(f"v_sub_f32 {v(vR + 4 + 2 * p)}, 0, {v(vR + 4 + 2 * p)}")
    A("s_waitcnt lgkmcnt(0)")
    core.run()
    A(f"v_add_u32 {v(vT0)}, {UT}, {v(vG16)}")
    c1 = -2.0 * LOG2E * 0.7978845608028654
    c2 = c1 * 0.044715
    A(f"s_mov_b32 {s(sT0)}, {hexf(c1)}")
    A(f"s_mov_b32 {s(sT1)}, {hexf(c1)}")
    A(f"s_mov_b32 {s(sT2)}, {hexf(c2)}")
    A(f"s_mov_b32 {s(sT3)}, {hexf(c2)}")
    A(f"v_mov_b32 {v(vT2)}, {hexf(c1)}")
    A(f"v_mov_b32 {v(vT3)}, {hexf(c1)}")
    sO = 44
    A(f"s_lshl_b32 {s(sO)}, {s(sMB)}, 3")
    A(f"s_lshl_b32 {s(sO + 1)}, {s(sW)}, 1")
    A(f"s_add_u32 {s(sO)}, {s(sO)}, {s(sO + 1)}")
    A(f"s_mul_i32 {s(sO)}, {s(sO)}, 48")
    A(f"s_mul_i32 {s(sO + 1)}, {s(sJ)}, 3")
    A(f"s_add_u32 {s(sO)}, {s(sO)}, {s(sO + 1)}")
    A(f"s_lshl_b32 {s(sO)}, {s(sO)}, 10")
    A(f"s_add_u32 {s(sO)}, {s(sO)}, {L.ACT}")
    A(f"s_add_u32 {s(sO + 1)}, {s(sO)}, {48 * 1024}")
    ut = vS
    wk = vS + 32
    lq = LgQ(A)

    def rd(t6):
        b = ut + 16 * (t6 & 1)
        for k in range(4):
            lq.issue(f"ds_read_b128 {v(b + 4 * k, 4)}, {v(vT0)} offset:{(k * 96 + 16 * t6) * 4}", t6)
    rd(0)
    for t6 in range(6):
        if t6 + 1 < 6:
            rd(t6 + 1)
        lq.wait(lambda t: t <= t6)
        b = ut + 16 * (t6 & 1)
        ug, uu, tg, tu = b, b + 4, b + 8, b + 12
        for p in range(2):
            g, u = acc(p, t6), acc(p, 6 + t6)
            r, mr = v(vR + 2 * p, 2), v(vR + 4 + 2 * p, 2)
            w0 = wk + 16 * p
            for h in range(2):
                A(f"v_pk_fma_f32 {v(w0 + 2 * h, 2)}, {v(ug + 2 * h, 2)}, {mr}, {v(tg + 2 * h, 2)} op_sel_hi:[1,0,1]")
                A(f"v_pk_fma_f32 {v(w0 + 4 + 2 * h, 2)}, {v(uu + 2 * h, 2)}, {mr}, {v(tu + 2 * h, 2)} op_sel_hi:[1,0,1]")
            for h in range(2):
                A(f"v_pk_fma_f32 {v(g + 2 * h, 2)}, {v(g + 2 * h, 2)}, {r}, {v(w0 + 2 * h, 2)} op_sel_hi:[1,0,1]")
                A(f"v_pk_fma_f32 {v(u + 2 * h, 2)}, {v(u + 2 * h, 2)}, {r}, {v(w0 + 4 + 2 * h, 2)} op_sel_hi:[1,0,1]")
            for h in range(2):
                A(f"v_pk_mul_f32 {v(w0 + 2 * h, 2)}, {v(g + 2 * h, 2)}, {v(g + 2 * h, 2)}")
            for h in range(2):
                A(f"v_pk_fma_f32 {v(w0 + 2 * h, 2)}, {v(w0 + 2 * h, 2)}, {s(sT2, 2)}, {v(vT2, 2)}")
            for h in range(2):
                A(f"v_pk_mul_f32 {v(w0 + 2 * h, 2)}, {v(w0 + 2 * h, 2)}, {v(g + 2 * h, 2)}")
            for h in range(2):
                A(f"v_pk_mul_f32 {v(u + 2 * h, 2)}, {v(u + 2 * h, 2)}, {v(g + 2 * h, 2)}")
            for q in range(4):
                A(f"v_exp_f32 {v(w0 + q)}, {v(w0 + q)}")
            for h in range(2):
                A(f"v_pk_add_f32 {v(w0 + 2 * h, 2)}, {v(w0 + 2 * h, 2)}, 1.0 op_sel_hi:[1,0]")
            for q in range(4):
                A(f"v_rcp_f32 {v(w0 + q)}, {v(w0 + q)}")
            for h in range(2):
                A(f"v_pk_mul_f32 {v(u + 2 * h, 2)}, {v(u + 2 * h, 2)}, {v(w0 + 2 * h, 2)}")
            dst = acc(p, t6 & ~1) + 2 * (t6 & 1)
            if t6 & 1:
                A(f"v_cvt_pk_bf16_f32 {v(dst)}, {v(u)}, {v(u + 1)}")
                A(f"v_cvt_pk_bf16_f32 {v(dst + 1)}, {v(u + 2)}, {v(u + 3)}")
                vq.issue(f"buffer_store_dwordx4 {v(acc(p, t6 & ~1), 4)}, {v(vL16)}, {s(SRD_WS, 4)}, {s(sO + p)} offen offset:{1024 * (t6 >> 1)}", ("act", t6))
            else:
                A(f"v_cvt_pk_bf16_f32 {v(dst)}, {v(u)}, {v(u + 1)}")
                A(f"v_cvt_pk_bf16_f32 {v(dst + 1)}, {v(u + 2)}, {v(u + 3)}")
    A.label("k3_end", pad=False)
    A("s_endpgm")
    return dict(name=NAME, grid=256, lds=LDS, vgpr=248, agpr=160)
```

```python
S, D, H, DH, F = 2048, 640, 32, 20, 1536
_off = 0


def _alloc(n):
    global _off
    o = _off
    _off = (_off + n + 4095) // 4096 * 4096
    return o


XH = _alloc(20 * 129 * 1024)
WQ = _alloc(16 * 20 * 8 * 1024)
T1 = _alloc(10 * 16 * 128 * 4)
MOD = _alloc(4 * 640 * 4)
WO = _alloc(8 * 20 * 5 * 1024)
WGU = _alloc(16 * 20 * 12 * 1024)
WD = _alloc(8 * 48 * 5 * 1024)
UT2 = _alloc(5 * 2 * 3072 * 4)
OF = _alloc(128 * 20 * 1024)
X1 = _alloc(128 * 20 * 1024)
X1S = _alloc(128 * 20 * 1024)
ST2 = _alloc(2048 * 64)
ACT = _alloc(128 * 48 * 1024)
TS = _alloc(8 * 256 * 64)
WS_USED = _off
```

```python
import sys, os
sys.path.insert(0, os.path.dirname(os.path.abspath(__file__)))
from common import *
import k0, k1, k2, k3

HEADER = open(os.path.join(os.path.dirname(os.path.abspath(__file__)), "header.txt")).read()


def build(upto=5):
    gens = [k0.gen, k1.gen, k2.gen_k2, k3.gen, k2.gen_k4][:upto]
    body, infos = [], []
    for g in gens:
        A = Asm()
        info = g(A)
        infos.append(info)
        body.append(A.text())
    out = HEADER
    for i in infos:
        out += f"; @launch kernel={i['name']} grid=({i['grid']},1,1) block=(256,1,1) lds={i['lds']}\n"
    out += '.amdgcn_target "amdgcn-amd-amdhsa--gfx950"\n'
    for b in body:
        out += b
    for i in infos:
        out += kernel_desc(i["name"], i["vgpr"], i["agpr"])
    return out


if __name__ == "__main__":
    dst = sys.argv[1] if len(sys.argv) > 1 else "adaLN_cond__sliding_local_dilated__geglu_ffn__prompt.s"
    txt = build()
    open(dst, "w").write(txt)
    print("wrote", dst, len(txt), "bytes")
```

```python
from asmlib import *
import layout as L

KA_X, KA_WQKV, KA_WO, KA_BX, KA_WG, KA_WU, KA_WD, KA_C, KA_WMOD, KA_OUT, KA_DBG, KA_WS = [8 * i for i in range(12)]
SZ_X = 2048 * 640 * 2
SZ_WQKV = 640 * 1920 * 2
SZ_WO = 640 * 640 * 2
SZ_WG = 640 * 1536 * 2
SZ_WD = 1536 * 640 * 2
SZ_C = 640 * 2
SZ_WMOD = 640 * 3840 * 2
SZ_OUT = 2048 * 640 * 2
LOG2E = 1.4426950408889634


def f2u(x):
    import struct
    return struct.unpack("<I", struct.pack("<f", x))[0]


def hexf(x):
    return hex(f2u(x))


def kernel_head(A, name):
    A.raw(".text")
    A.raw(f".globl {name}")
    A.raw(".p2align 8")
    A.raw(f".type {name},@function")
    A.raw(f"{name}:")


def kernel_desc(name, nvgpr_arch, nagpr, nsgpr=102):
    acc = (nvgpr_arch + 3) // 4 * 4
    total = acc + nagpr if nagpr else nvgpr_arch
    return f""".section .rodata,"a"
.p2align 6
.amdhsa_kernel {name}
  .amdhsa_next_free_vgpr {total}
  .amdhsa_next_free_sgpr {nsgpr}
  .amdhsa_accum_offset {acc}
  .amdhsa_group_segment_fixed_size 0
  .amdhsa_kernarg_size 96
  .amdhsa_user_sgpr_count 2
  .amdhsa_user_sgpr_kernarg_segment_ptr 1
  .amdhsa_system_sgpr_workgroup_id_x 1
  .amdhsa_float_denorm_mode_32 3
.end_amdhsa_kernel
"""


def load_ptr(A, srd, ka_off):
    A(f"s_load_dwordx2 {s(srd, 2)}, s[0:1], {ka_off}")


def srd_tail(A, srd, size):
    A(f"s_mov_b32 {s(srd + 2)}, {size}")
    A(f"s_mov_b32 {s(srd + 3)}, 0x20000")


def entry(A, nwg, endlabel):
    A(f"s_cmp_ge_u32 s2, {nwg}")
    A(f"s_cbranch_scc1 {endlabel}")


def wave_id(A, sdst, vtmp, vlane):
    A(f"v_lshrrev_b32 {v(vtmp)}, 6, v0")
    A(f"v_and_b32 {v(vlane)}, 63, v0")
    A(f"v_readfirstlane_b32 {s(sdst)}, {v(vtmp)}")


def swz_src_chunk(A, vdst, vlane, swave, vt, st):
    A(f"v_bfe_u32 {v(vt)}, {v(vlane)}, 4, 1")
    A(f"v_bfe_u32 {v(vdst)}, {v(vlane)}, 5, 1")
    A(f"s_and_b32 {s(st)}, {s(swave)}, 1")
    A(f"v_xor_b32 {v(vdst)}, {s(st)}, {v(vdst)}")
    A(f"v_lshl_or_b32 {v(vdst)}, {v(vdst)}, 1, {v(vt)}")
    A(f"v_lshlrev_b32 {v(vdst)}, 1, {v(vdst)}")
    A(f"v_and_b32 {v(vt)}, 7, {v(vlane)}")
    A(f"v_xor_b32 {v(vdst)}, {v(vdst)}, {v(vt)}")


def tr_addr(A, vdst, vlane, h, perm, stile, t0, t1, t3, t2, rowbytes=128, swz=True, tile_is_sgpr=True):
    A(f"v_lshrrev_b32 {v(t0)}, 4, {v(vlane)}")
    A(f"v_bfe_u32 {v(t1)}, {v(vlane)}, 2, 2")
    if perm == "nat":
        A(f"v_lshl_add_u32 {v(t0)}, {v(t0)}, 3, {v(t1)}")
        if h:
            A(f"v_add_u32 {v(t0)}, 4, {v(t0)}")
    else:
        A(f"v_lshl_add_u32 {v(t0)}, {v(t0)}, 2, {v(t1)}")
        if h:
            A(f"v_add_u32 {v(t0)}, 16, {v(t0)}")
    A(f"v_bfe_u32 {v(t1)}, {v(vlane)}, 1, 1")
    if tile_is_sgpr:
        A(f"s_lshl_b32 {s(t2)}, {s(stile)}, 1")
        A(f"v_add_u32 {v(t1)}, {s(t2)}, {v(t1)}")
    else:
        if stile:
            A(f"v_add_u32 {v(t1)}, {2 * stile}, {v(t1)}")
    if swz:
        A(f"v_bfe_u32 {v(vdst)}, {v(t0)}, 2, 1")
        A(f"v_bfe_u32 {v(t3)}, {v(t0)}, 3, 1")
        A(f"v_xor_b32 {v(vdst)}, {v(vdst)}, {v(t3)}")
        A(f"v_bfe_u32 {v(t3)}, {v(t0)}, 1, 1")
        A(f"v_lshl_or_b32 {v(vdst)}, {v(vdst)}, 1, {v(t3)}")
        A(f"v_lshlrev_b32 {v(vdst)}, 1, {v(vdst)}")
        A(f"v_xor_b32 {v(t1)}, {v(t1)}, {v(vdst)}")
    A(f"v_lshlrev_b32 {v(t1)}, 4, {v(t1)}")
    A(f"v_and_b32 {v(vdst)}, 1, {v(vlane)}")
    A(f"v_lshl_add_u32 {v(t1)}, {v(vdst)}, 3, {v(t1)}")
    sh = {128: 7, 256: 8}[rowbytes]
    A(f"v_lshl_add_u32 {v(vdst)}, {v(t0)}, {sh}, {v(t1)}")


def round_bf16(A, vdst, vsrc0, vsrc1, vtmp):
    A(f"v_cvt_pk_bf16_f32 {v(vtmp)}, {v(vsrc0)}, {v(vsrc1)}")
    A(f"v_lshlrev_b32 {v(vdst)}, 16, {v(vtmp)}")
    A(f"v_and_b32 {v(vdst + 1)}, 0xffff0000, {v(vtmp)}")


STAMPS = False
sSTAMP = 72


class Stamper:
    def __init__(self, A, kidx, srd_ws, swave):
        self.A, self.k, self.srd, self.sw, self.n = A, kidx, srd_ws, swave, 0
        self.names = []

    def real(self, name):
        if not STAMPS:
            return
        A = self.A
        A(f"s_memrealtime {s(sSTAMP, 2)}")
        A("s_waitcnt lgkmcnt(0)")
        A(f"s_mov_b32 {s(sSTAMP + 4 + self.n)}, {s(sSTAMP)}")
        self.names.append(name)
        self.n += 1

    def clk(self, name):
        if not STAMPS:
            return
        A = self.A
        A(f"s_memtime {s(sSTAMP, 2)}")
        A("s_waitcnt lgkmcnt(0)")
        A(f"s_mov_b32 {s(sSTAMP + 4 + self.n)}, {s(sSTAMP)}")
        self.names.append(name)
        self.n += 1

    def flush(self, vt, vt2):
        if not STAMPS:
            return
        A = self.A
        lab = f"stamp_skip_{self.k}"
        A(f"s_cmp_eq_u32 {s(self.sw)}, 0")
        A(f"s_cbranch_scc0 {lab}")
        A(f"s_lshl_b32 {s(sSTAMP)}, s2, 6")
        A(f"s_add_u32 {s(sSTAMP)}, {s(sSTAMP)}, {L.TS + self.k * 256 * 64}")
        A(f"v_mov_b32 {v(vt2)}, 0")
        A("s_mov_b64 exec, 1")
        for i in range(self.n):
            A(f"v_mov_b32 {v(vt)}, {s(sSTAMP + 4 + i)}")
            A(f"buffer_store_dword {v(vt)}, {v(vt2)}, {s(self.srd, 4)}, {s(sSTAMP)} offen offset:{4 * i}")
            A("s_waitcnt vmcnt(0)")
        A("s_mov_b64 exec, -1")
        A.label(lab, pad=False)
        STAMP_NAMES[self.k] = self.names


STAMP_NAMES = {}


DBGTS = False


def dbg_stamp(A, kidx, slot, swave):
    if not DBGTS:
        return
    lab = f"dbgts_{kidx}_{slot}"
    A("s_cmp_eq_u32 s2, 0")
    A(f"s_cbranch_scc0 {lab}")
    A("s_load_dwordx2 s[96:97], s[0:1], 80")
    A("s_memrealtime s[94:95]")
    A("s_waitcnt lgkmcnt(0)")
    A(f"s_add_u32 s96, s96, {512 * (4 - kidx)}")
    A("s_addc_u32 s97, s97, 0")
    A("s_mov_b32 s98, 256")
    A("s_mov_b32 s99, 0x20000")
    A("v_mov_b32 v250, s94")
    A("v_mov_b32 v251, 0")
    A("s_mov_b64 s[92:93], exec")
    A("s_mov_b64 exec, 1")
    A(f"buffer_store_dword v250, v251, s[96:99], 0 offen offset:{4 * (2 * kidx + slot)}")
    A("s_mov_b64 exec, s[92:93]")
    A.label(lab, pad=False)
```

```python
from common import *
import common
from common import code_prefetch

NAME = "k0_prep_kernel"
SV = 0
C1 = SV + 1536
CH = 2048
STRIP = CH + 65536
LDS = STRIP + 81920

SRD_X, SRD_WQKV, SRD_WO, SRD_C, SRD_WMOD, SRD_WS = 8, 12, 16, 20, 24, 28
sW, sX, sSLOT, sTYPE, sCOL, sKB, sHP, sWOID = 32, 33, 34, 35, 36, 37, 38, 39
sT0, sT1, sT2, sT3 = 40, 41, 42, 43
vLANE, vL16, vT0, vT1, vT2, vT3 = 1, 2, 3, 4, 5, 6
vSTRIP = 7
vCHK = 8
vG16 = 9
vTRA, vTRB, vTRA2, vTRB2 = 10, 11, 12, 13
vXO = 14
vACC = 16
vB = 24


def silu_job(A):
    A(f"v_subrev_u32 {v(vT0)}, 128, v0")
    A(f"v_lshlrev_b32 {v(vXO)}, 2, {v(vT0)}")
    for i in range(3):
        A(f"buffer_load_dword {v(vB + i)}, {v(vXO)}, {s(SRD_C, 4)}, 0 offen offset:{512 * i}")


def silu_compute(A):
    A(f"s_mov_b32 {s(sT0)}, {hexf(-LOG2E)}")
    for i in range(3):
        lo, hi = vB + 4 + 2 * i, vB + 5 + 2 * i
        A(f"v_lshlrev_b32 {v(lo)}, 16, {v(vB + i)}")
        A(f"v_and_b32 {v(hi)}, 0xffff0000, {v(vB + i)}")
    for r in range(6):
        A(f"v_mul_f32 {v(vB + 12 + r)}, {s(sT0)}, {v(vB + 4 + r)}")
    for r in range(6):
        A(f"v_exp_f32 {v(vB + 12 + r)}, {v(vB + 12 + r)}")
    for r in range(6):
        A(f"v_add_f32 {v(vB + 12 + r)}, 1.0, {v(vB + 12 + r)}")
    for r in range(6):
        A(f"v_rcp_f32 {v(vB + 12 + r)}, {v(vB + 12 + r)}")
    for r in range(6):
        A(f"v_mul_f32 {v(vB + 12 + r)}, {v(vB + 4 + r)}, {v(vB + 12 + r)}")
    for i in range(3):
        A(f"v_cvt_pk_bf16_f32 {v(vB + i)}, {v(vB + 12 + 2 * i)}, {v(vB + 13 + 2 * i)}")
    for i in range(3):
        A(f"ds_write_b32 {v(vXO)}, {v(vB + i)} offset:{SV + 512 * i}")


def xhat_loads(A):
    A(f"s_lshl_b32 {s(sT0)}, s2, 3")
    A(f"s_lshl_b32 {s(sT1)}, {s(sW)}, 2")
    A(f"s_add_u32 {s(sT0)}, {s(sT0)}, {s(sT1)}")
    A(f"v_lshrrev_b32 {v(vT0)}, 4, {v(vLANE)}")
    A(f"v_add_u32 {v(vT0)}, {s(sT0)}, {v(vT0)}")
    A(f"s_movk_i32 {s(sT1)}, 1280")
    A(f"v_mul_lo_u32 {v(vXO)}, {v(vT0)}, {s(sT1)}")
    A(f"v_and_b32 {v(vT0)}, 15, {v(vLANE)}")
    A(f"v_lshl_add_u32 {v(vXO)}, {v(vT0)}, 4, {v(vXO)}")
    for j in range(5):
        A(f"buffer_load_dwordx4 {v(vB + 4 * j, 4)}, {v(vXO)}, {s(SRD_X, 4)}, 0 offen offset:{256 * j}")


def dpp_rowsum(A, r):
    for n in (8, 4, 2, 1):
        A(f"v_add_f32_dpp {v(r)}, {v(r)}, {v(r)} row_ror:{n} row_mask:0xf bank_mask:0xf")


def xhat_compute(A):
    xr = vB
    f = vB + 20
    assert f % 2 == 0
    for q in range(20):
        A(f"v_lshlrev_b32 {v(f + 2 * q)}, 16, {v(xr + q)}")
        A(f"v_and_b32 {v(f + 2 * q + 1)}, 0xffff0000, {v(xr + q)}")
    acc = vB + 60
    A(f"v_pk_add_f32 {v(acc, 2)}, {v(f, 2)}, {v(f + 2, 2)}")
    A(f"v_pk_add_f32 {v(acc + 2, 2)}, {v(f + 4, 2)}, {v(f + 6, 2)}")
    for q in range(4, 20, 2):
        A(f"v_pk_add_f32 {v(acc, 2)}, {v(acc, 2)}, {v(f + 2 * q, 2)}")
        A(f"v_pk_add_f32 {v(acc + 2, 2)}, {v(acc + 2, 2)}, {v(f + 2 * q + 2, 2)}")
    A(f"v_pk_add_f32 {v(acc, 2)}, {v(acc, 2)}, {v(acc + 2, 2)}")
    A(f"v_add_f32 {v(acc)}, {v(acc)}, {v(acc + 1)}")
    dpp_rowsum(A, acc)
    A(f"v_mul_f32 {v(acc)}, {hexf(-1.0 / 640)}, {v(acc)}")
    for q in range(20):
        A(f"v_pk_add_f32 {v(f + 2 * q, 2)}, {v(f + 2 * q, 2)}, {v(acc, 2)} op_sel_hi:[1,0]")
    A(f"v_pk_mul_f32 {v(acc + 2, 2)}, {v(f, 2)}, {v(f, 2)}")
    A(f"v_pk_mul_f32 {v(acc + 4, 2)}, {v(f + 2, 2)}, {v(f + 2, 2)}")
    for q in range(2, 20, 2):
        A(f"v_pk_fma_f32 {v(acc + 2, 2)}, {v(f + 2 * q, 2)}, {v(f + 2 * q, 2)}, {v(acc + 2, 2)}")
        A(f"v_pk_fma_f32 {v(acc + 4, 2)}, {v(f + 2 * q + 2, 2)}, {v(f + 2 * q + 2, 2)}, {v(acc + 4, 2)}")
    A(f"v_pk_add_f32 {v(acc + 2, 2)}, {v(acc + 2, 2)}, {v(acc + 4, 2)}")
    A(f"v_add_f32 {v(acc + 2)}, {v(acc + 2)}, {v(acc + 3)}")
    dpp_rowsum(A, acc + 2)
    A(f"v_mov_b32 {v(acc + 3)}, {hexf(1e-5)}")
    A(f"v_fmac_f32 {v(acc + 3)}, {hexf(1.0 / 640)}, {v(acc + 2)}")
    A(f"v_rsq_f32 {v(acc + 2)}, {v(acc + 3)}")
    for q in range(20):
        A(f"v_pk_mul_f32 {v(f + 2 * q, 2)}, {v(f + 2 * q, 2)}, {v(acc + 2, 2)} op_sel_hi:[1,0]")
    for q in range(20):
        A(f"v_cvt_pk_bf16_f32 {v(xr + q)}, {v(f + 2 * q)}, {v(f + 2 * q + 1)}")
    A(f"v_and_b32 {v(vT0)}, 15, {v(vLANE)}")
    A(f"v_lshrrev_b32 {v(vT1)}, 2, {v(vT0)}")
    A(f"s_mov_b32 {s(sT0)}, {129 * 1024}")
    A(f"v_mul_lo_u32 {v(vXO)}, {v(vT1)}, {s(sT0)}")
    A(f"v_and_b32 {v(vT0)}, 3, {v(vT0)}")
    A(f"v_lshl_add_u32 {v(vXO)}, {v(vT0)}, 8, {v(vXO)}")
    A(f"v_lshrrev_b32 {v(vT0)}, 4, {v(vLANE)}")
    A(f"v_lshl_add_u32 {v(vXO)}, {v(vT0)}, 4, {v(vXO)}")
    A(f"s_lshr_b32 {s(sT0)}, s2, 1")
    A(f"s_add_u32 {s(sT0)}, {s(sT0)}, 1")
    A(f"s_lshl_b32 {s(sT0)}, {s(sT0)}, 10")
    A(f"s_and_b32 {s(sT1)}, s2, 1")
    A(f"s_lshl_b32 {s(sT1)}, {s(sT1)}, 7")
    A(f"s_add_u32 {s(sT0)}, {s(sT0)}, {s(sT1)}")
    A(f"s_lshl_b32 {s(sT1)}, {s(sW)}, 6")
    A(f"s_add_u32 {s(sT0)}, {s(sT0)}, {s(sT1)}")
    if L.XH:
        A(f"s_add_u32 {s(sT0)}, {s(sT0)}, {L.XH}")
    for j in range(5):
        A(f"buffer_store_dwordx4 {v(xr + 4 * j, 4)}, {v(vXO)}, {s(SRD_WS, 4)}, {s(sT0)} offen")
        if j < 4:
            A(f"s_add_u32 {s(sT0)}, {s(sT0)}, {4 * 129 * 1024}")


def pad_zero(A):
    for r in range(4):
        A(f"v_mov_b32 {v(vB + 32 + r)}, 0")
    A(f"s_sub_u32 {s(sT0)}, {s(sW)}, 2")
    A(f"s_mul_i32 {s(sT0)}, {s(sT0)}, {10 * 129 * 1024}")
    if L.XH:
        A(f"s_add_u32 {s(sT0)}, {s(sT0)}, {L.XH}")
    for j in range(10):
        A(f"buffer_store_dwordx4 {v(vB + 32, 4)}, {v(vL16)}, {s(SRD_WS, 4)}, {s(sT0)} offen")
        if j < 9:
            A(f"s_add_u32 {s(sT0)}, {s(sT0)}, {129 * 1024}")


def strip_dma(A):
    swz_src_chunk(A, vT0, vLANE, sW, vT1, sT0)
    A(f"v_lshrrev_b32 {v(vT1)}, 3, {v(vLANE)}")
    A(f"s_movk_i32 {s(sT0)}, 7680")
    A(f"v_mul_lo_u32 {v(vSTRIP)}, {v(vT1)}, {s(sT0)}")
    A(f"v_lshl_add_u32 {v(vSTRIP)}, {v(vT0)}, 4, {v(vSTRIP)}")
    A(f"s_mul_i32 {s(sT0)}, {s(sW)}, 61440")
    A(f"s_add_u32 {s(sT0)}, {s(sT0)}, {s(sCOL)}")
    A(f"s_lshl_b32 {s(sT1)}, {s(sW)}, 10")
    if STRIP:
        A(f"s_add_u32 {s(sT1)}, {s(sT1)}, {STRIP}")
    for u in range(20):
        A(f"s_mov_b32 m0, {s(sT1)}")
        if u + 1 < 20:
            A(f"s_add_u32 {s(sT1)}, {s(sT1)}, 4096")
        A(f"buffer_load_dwordx4 {v(vSTRIP)}, {s(SRD_WMOD, 4)}, {s(sT0)} offen lds")
        if u + 1 < 20:
            A(f"s_add_u32 {s(sT0)}, {s(sT0)}, {4 * 61440}")


def qkv_chunk_voff(A):
    A(f"v_and_b32 {v(vT0)}, 15, {v(vLANE)}")
    A(f"v_min_u32 {v(vT0)}, 14, {v(vT0)}")
    A(f"v_mul_u32_u24 {v(vT1)}, 52, {v(vT0)}")
    A(f"v_lshrrev_b32 {v(vT1)}, 8, {v(vT1)}")
    A(f"v_mul_u32_u24 {v(vT2)}, 5, {v(vT1)}")
    A(f"v_sub_u32 {v(vT0)}, {v(vT0)}, {v(vT2)}")
    A(f"v_lshlrev_b32 {v(vT0)}, 4, {v(vT0)}")
    A(f"v_mul_u32_u24 {v(vT1)}, 1280, {v(vT1)}")
    A(f"v_add_u32 {v(vT0)}, {v(vT0)}, {v(vT1)}")
    A(f"v_lshrrev_b32 {v(vT1)}, 4, {v(vLANE)}")
    A(f"v_mul_u32_u24 {v(vT1)}, 3840, {v(vT1)}")
    A(f"v_add_u32 {v(vCHK)}, {v(vT0)}, {v(vT1)}")


def chunk_dma_C(A):
    qkv_chunk_voff(A)
    A(f"s_lshl_b32 {s(sT0)}, {s(sKB)}, 4")
    A(f"s_add_u32 {s(sT0)}, {s(sT0)}, {s(sW)}")
    A(f"s_mul_i32 {s(sT0)}, {s(sT0)}, {4 * 3840}")
    A(f"s_mul_i32 {s(sT1)}, {s(sHP)}, 80")
    A(f"s_add_u32 {s(sT0)}, {s(sT0)}, {s(sT1)}")
    A(f"s_lshl_b32 {s(sT1)}, {s(sW)}, 10")
    A(f"s_add_u32 {s(sT1)}, {s(sT1)}, {CH}")
    for u in range(4):
        A(f"s_mov_b32 m0, {s(sT1)}")
        A(f"s_add_u32 {s(sT1)}, {s(sT1)}, 4096")
        A(f"buffer_load_dwordx4 {v(vCHK)}, {s(SRD_WQKV, 4)}, {s(sT0)} offen lds")
        A(f"s_add_u32 {s(sT0)}, {s(sT0)}, {16 * 3840}")


def chunk_dma_D(A):
    qkv_chunk_voff(A)
    A(f"s_mul_i32 {s(sT0)}, {s(sKB)}, {64 * 3840}")
    A(f"s_lshl_b32 {s(sT1)}, {s(sHP)}, 2")
    A(f"s_add_u32 {s(sT1)}, {s(sT1)}, {s(sW)}")
    A(f"s_mul_i32 {s(sT1)}, {s(sT1)}, 80")
    A(f"s_add_u32 {s(sT0)}, {s(sT0)}, {s(sT1)}")
    A(f"s_lshl_b32 {s(sT1)}, {s(sW)}, 14")
    A(f"s_add_u32 {s(sT1)}, {s(sT1)}, {CH}")
    for u in range(16):
        A(f"s_mov_b32 m0, {s(sT1)}")
        A(f"s_add_u32 {s(sT1)}, {s(sT1)}, 1024")
        A(f"buffer_load_dwordx4 {v(vCHK)}, {s(SRD_WQKV, 4)}, {s(sT0)} offen lds")
        A(f"s_add_u32 {s(sT0)}, {s(sT0)}, {4 * 3840}")


def chunk128_dma(A, srd, rowbytes, s_row0, s_colbytes, ldsbase, vchk, vlane, sw, t, st, q=None, tag=None, nt=False):
    swz_src_chunk(A, t[0], vlane, sw, t[1], st[0])
    A(f"v_lshrrev_b32 {v(t[1])}, 3, {v(vlane)}")
    A(f"v_mul_u32_u24 {v(vchk)}, {rowbytes}, {v(t[1])}")
    A(f"v_lshl_add_u32 {v(vchk)}, {v(t[0])}, 4, {v(vchk)}")
    A(f"s_lshl_b32 {s(st[0])}, {s(sw)}, 3")
    A(f"s_add_u32 {s(st[0])}, {s(st[0])}, {s(s_row0)}")
    A(f"s_mul_i32 {s(st[0])}, {s(st[0])}, {rowbytes}")
    A(f"s_add_u32 {s(st[0])}, {s(st[0])}, {s(s_colbytes)}")
    A(f"s_lshl_b32 {s(st[1])}, {s(sw)}, 10")
    A(f"s_add_u32 {s(st[1])}, {s(st[1])}, {ldsbase}")
    for u in range(4):
        A(f"s_mov_b32 m0, {s(st[1])}")
        A(f"s_add_u32 {s(st[1])}, {s(st[1])}, 4096")
        txt = f"buffer_load_dwordx4 {v(vchk)}, {s(srd, 4)}, {s(st[0])} offen" + (" nt" if nt else "") + " lds"
        if q is None:
            A(txt)
        else:
            q.issue(txt, tag)
        A(f"s_add_u32 {s(st[0])}, {s(st[0])}, {32 * rowbytes}")


def chunk_dma_WO(A):
    A(f"s_mul_i32 {s(sT2)}, {s(sWOID)}, 205")
    A(f"s_lshr_b32 {s(sT2)}, {s(sT2)}, 11")
    A(f"s_mul_i32 {s(sT3)}, {s(sT2)}, 10")
    A(f"s_sub_u32 {s(sT3)}, {s(sWOID)}, {s(sT3)}")
    A(f"s_lshl_b32 {s(sT2)}, {s(sT2)}, 7")
    A(f"s_lshl_b32 {s(sT3)}, {s(sT3)}, 7")
    chunk128_dma(A, SRD_WO, 1280, sT2, sT3, CH, vCHK, vLANE, sW, (vT0, vT1), (sT0, sT1))


def gemv(A):
    tr_addr(A, vTRA, vLANE, 0, "nat", sW, vT0, vT1, vT2, sT0)
    tr_addr(A, vTRB, vLANE, 1, "nat", sW, vT0, vT1, vT2, sT0)
    A(f"v_add_u32 {v(vTRA)}, {STRIP}, {v(vTRA)}")
    A(f"v_add_u32 {v(vTRB)}, {STRIP}, {v(vTRB)}")
    A(f"v_add_u32 {v(vTRA2)}, 0x10000, {v(vTRA)}")
    A(f"v_add_u32 {v(vTRB2)}, 0x10000, {v(vTRB)}")
    A(f"v_lshrrev_b32 {v(vG16)}, 4, {v(vLANE)}")
    A(f"v_lshlrev_b32 {v(vG16)}, 4, {v(vG16)}")
    lq = LgQ(A)

    def reads(ks):
        b = vB + 8 * (ks % 4)
        ra, rb = (vTRA, vTRB) if ks < 16 else (vTRA2, vTRB2)
        off = (ks % 16) * 4096
        lq.issue(f"ds_read_b64_tr_b16 {v(b, 2)}, {v(ra)} offset:{off}", ks)
        lq.issue(f"ds_read_b64_tr_b16 {v(b + 2, 2)}, {v(rb)} offset:{off}", ks)
        lq.issue(f"ds_read_b128 {v(b + 4, 4)}, {v(vG16)} offset:{SV + ks * 64}", ks)
    for ks in range(3):
        reads(ks)
    for ks in range(20):
        if ks + 3 < 20:
            reads(ks + 3)
        lq.wait(lambda t: t <= ks)
        b = vB + 8 * (ks % 4)
        c = v(vACC, 4) if ks else "0"
        A(f"v_mfma_f32_16x16x32_bf16 {v(vACC, 4)}, {v(b, 4)}, {v(b + 4, 4)}, {c}")


EXEC_J0 = "0x0001000100010001"


def exec_j0(A):
    A(f"s_mov_b32 exec_lo, 0x00010001")
    A(f"s_mov_b32 exec_hi, 0x00010001")


def exec_all(A):
    A("s_mov_b64 exec, -1")


def tail_C(A):
    r = vB
    round_bf16(A, r, vACC, vACC + 1, vT0)
    round_bf16(A, r + 2, vACC + 2, vACC + 3, vT0)
    A(f"v_pk_add_f32 {v(r, 2)}, {v(r, 2)}, 1.0 op_sel_hi:[1,0]")
    A(f"v_pk_add_f32 {v(r + 2, 2)}, {v(r + 2, 2)}, 1.0 op_sel_hi:[1,0]")
    round_bf16(A, r + 4, r, r + 1, vT0)
    round_bf16(A, r + 6, r + 2, r + 3, vT0)
    A(f"s_lshl_b32 {s(sT0)}, {s(sW)}, 6")
    A(f"v_add_u32 {v(vT0)}, {s(sT0)}, {v(vG16)}")
    exec_j0(A)
    A(f"ds_write_b128 {v(vT0)}, {v(r + 4, 4)} offset:{C1}")
    exec_all(A)
    A("s_waitcnt lgkmcnt(0)")
    A("s_barrier")
    A(f"s_lshl_b32 {s(sT1)}, {s(sW)}, 1")
    tr_addr(A, vTRA, vLANE, 0, "nat", sT1, vT0, vT1, vT2, sT0, rowbytes=256, swz=False)
    tr_addr(A, vTRB, vLANE, 1, "nat", sT1, vT0, vT1, vT2, sT0, rowbytes=256, swz=False)
    fr = vB + 8
    for ks in range(2):
        for p in range(2):
            b = fr + 4 * (2 * ks + p)
            off = CH + ks * 32 * 256 + p * 32
            A(f"ds_read_b64_tr_b16 {v(b, 2)}, {v(vTRA)} offset:{off}")
            A(f"ds_read_b64_tr_b16 {v(b + 2, 2)}, {v(vTRB)} offset:{off}")
    cs = vB + 24
    A(f"v_lshlrev_b32 {v(vT0)}, 1, {v(vG16)}")
    for ks in range(2):
        A(f"ds_read_b128 {v(cs + 8 * ks, 4)}, {v(vT0)} offset:{C1 + ks * 128}")
        A(f"ds_read_b128 {v(cs + 8 * ks + 4, 4)}, {v(vT0)} offset:{C1 + ks * 128 + 16}")
    A(f"s_mul_i32 {s(sT0)}, {s(sHP)}, 20")
    A(f"s_lshl_b32 {s(sT1)}, {s(sKB)}, 1")
    A(f"s_add_u32 {s(sT0)}, {s(sT0)}, {s(sT1)}")
    A(f"s_lshl_b32 {s(sT0)}, {s(sT0)}, 3")
    A(f"s_lshl_b32 {s(sT1)}, {s(sW)}, 1")
    A(f"s_add_u32 {s(sT0)}, {s(sT0)}, {s(sT1)}")
    A(f"s_lshl_b32 {s(sT0)}, {s(sT0)}, 10")
    A(f"s_add_u32 {s(sT0)}, {s(sT0)}, {L.WQ}")
    A(f"s_add_u32 {s(sT1)}, {s(sT0)}, 8192")
    A("s_waitcnt lgkmcnt(0)")
    u = vB + 40
    for ks in range(2):
        for p in range(2):
            b = fr + 4 * (2 * ks + p)
            for q in range(4):
                A(f"v_lshlrev_b32 {v(u + 2 * q)}, 16, {v(b + q)}")
                A(f"v_and_b32 {v(u + 2 * q + 1)}, 0xffff0000, {v(b + q)}")
            for q in range(4):
                A(f"v_pk_mul_f32 {v(u + 2 * q, 2)}, {v(u + 2 * q, 2)}, {v(cs + 8 * ks + 2 * q, 2)}")
            for q in range(4):
                A(f"v_cvt_pk_bf16_f32 {v(b + q)}, {v(u + 2 * q)}, {v(u + 2 * q + 1)}")
            A(f"buffer_store_dwordx4 {v(b, 4)}, {v(vL16)}, {s(SRD_WS, 4)}, {s(sT0 + ks)} offen offset:{1024 * p}")


def tail_D(A):
    A(f"v_cvt_pk_bf16_f32 {v(vB)}, {v(vACC)}, {v(vACC + 1)}")
    A(f"v_cvt_pk_bf16_f32 {v(vB + 1)}, {v(vACC + 2)}, {v(vACC + 3)}")
    A(f"s_lshl_b32 {s(sT0)}, {s(sW)}, 5")
    A(f"v_lshrrev_b32 {v(vT0)}, 1, {v(vG16)}")
    A(f"v_add_u32 {v(vT0)}, {s(sT0)}, {v(vT0)}")
    exec_j0(A)
    A(f"ds_write_b64 {v(vT0)}, {v(vB, 2)} offset:{C1}")
    exec_all(A)
    A("s_waitcnt lgkmcnt(0)")
    A("s_barrier")
    sa = vB + 4
    for ks in range(2):
        A(f"ds_read_b128 {v(sa + 4 * ks, 4)}, {v(vG16)} offset:{C1 + ks * 64}")
    tr_addr(A, vTRA, vLANE, 0, "nat", 0, vT0, vT1, vT2, sT0, rowbytes=256, swz=False, tile_is_sgpr=False)
    tr_addr(A, vTRB, vLANE, 1, "nat", 0, vT0, vT1, vT2, sT0, rowbytes=256, swz=False, tile_is_sgpr=False)
    A(f"s_lshl_b32 {s(sT0)}, {s(sW)}, 14")
    A(f"v_add_u32 {v(vTRA)}, {s(sT0)}, {v(vTRA)}")
    A(f"v_add_u32 {v(vTRB)}, {s(sT0)}, {v(vTRB)}")
    A(f"s_lshl_b32 {s(sT0)}, {s(sKB)}, 4")
    A(f"s_lshl_b32 {s(sT1)}, {s(sHP)}, 2")
    A(f"s_add_u32 {s(sT0)}, {s(sT0)}, {s(sT1)}")
    A(f"s_add_u32 {s(sT0)}, {s(sT0)}, {s(sW)}")
    A(f"s_lshl_b32 {s(sT0)}, {s(sT0)}, 9")
    A(f"s_add_u32 {s(sT0)}, {s(sT0)}, {L.T1}")
    fr = vB + 16
    acc = vB + 48
    lq = LgQ(A)
    lq.q = ["sa", "sa"]

    def reads(nt):
        for ks in range(2):
            b = fr + 8 * (nt % 2) + 4 * ks
            off = CH + ks * 32 * 256 + nt * 32
            lq.issue(f"ds_read_b64_tr_b16 {v(b, 2)}, {v(vTRA)} offset:{off}", nt)
            lq.issue(f"ds_read_b64_tr_b16 {v(b + 2, 2)}, {v(vTRB)} offset:{off}", nt)
    reads(0)
    for nt in range(8):
        if nt + 1 < 8:
            reads(nt + 1)
        lq.wait(lambda t: t == "sa" or t <= nt)
        b = fr + 8 * (nt % 2)
        A(f"v_mfma_f32_16x16x32_bf16 {v(acc + 4 * nt, 4)}, {v(b, 4)}, {v(sa, 4)}, 0")
        A(f"v_mfma_f32_16x16x32_bf16 {v(acc + 4 * nt, 4)}, {v(b + 4, 4)}, {v(sa + 4, 4)}, {v(acc + 4 * nt, 4)}")
    exec_j0(A)
    for nt in range(8):
        A(f"buffer_store_dwordx4 {v(acc + 4 * nt, 4)}, {v(vG16)}, {s(SRD_WS, 4)}, {s(sT0)} offen offset:{64 * nt}")
    exec_all(A)


def tail_B(A):
    r = vB
    round_bf16(A, r, vACC, vACC + 1, vT0)
    round_bf16(A, r + 2, vACC + 2, vACC + 3, vT0)
    A(f"s_cmp_lt_u32 {s(sWOID)}, 20")
    A("s_cbranch_scc1 k0_B_store")
    A(f"s_cmp_ge_u32 {s(sWOID)}, 30")
    A("s_cbranch_scc1 k0_B_store")
    A(f"v_pk_add_f32 {v(r, 2)}, {v(r, 2)}, 1.0 op_sel_hi:[1,0]")
    A(f"v_pk_add_f32 {v(r + 2, 2)}, {v(r + 2, 2)}, 1.0 op_sel_hi:[1,0]")
    round_bf16(A, r, r, r + 1, vT0)
    round_bf16(A, r + 2, r + 2, r + 3, vT0)
    A.label("k0_B_store")
    A(f"s_lshl_b32 {s(sT0)}, {s(sWOID)}, 8")
    A(f"s_lshl_b32 {s(sT1)}, {s(sW)}, 6")
    A(f"s_add_u32 {s(sT0)}, {s(sT0)}, {s(sT1)}")
    A(f"s_add_u32 {s(sT0)}, {s(sT0)}, {L.MOD}")
    exec_j0(A)
    A(f"buffer_store_dwordx4 {v(r, 4)}, {v(vG16)}, {s(SRD_WS, 4)}, {s(sT0)} offen")
    exec_all(A)


def repack_WO(A):
    A(f"s_mul_i32 {s(sT2)}, {s(sWOID)}, 205")
    A(f"s_lshr_b32 {s(sT2)}, {s(sT2)}, 11")
    A(f"s_mul_i32 {s(sT3)}, {s(sT2)}, 10")
    A(f"s_sub_u32 {s(sT3)}, {s(sWOID)}, {s(sT3)}")
    A(f"s_lshl_b32 {s(sT3)}, {s(sT3)}, 2")
    A(f"s_add_u32 {s(sT3)}, {s(sT3)}, {s(sW)}")
    A(f"s_mul_i32 {s(sT0)}, {s(sT3)}, 205")
    A(f"s_lshr_b32 {s(sT0)}, {s(sT0)}, 10")
    A(f"s_mul_i32 {s(sT1)}, {s(sT0)}, 5")
    A(f"s_sub_u32 {s(sT1)}, {s(sT3)}, {s(sT1)}")
    A(f"s_mul_i32 {s(sT0)}, {s(sT0)}, 20")
    A(f"s_lshl_b32 {s(sT2)}, {s(sT2)}, 2")
    A(f"s_add_u32 {s(sT0)}, {s(sT0)}, {s(sT2)}")
    A(f"s_mul_i32 {s(sT0)}, {s(sT0)}, 5")
    A(f"s_add_u32 {s(sT0)}, {s(sT0)}, {s(sT1)}")
    A(f"s_lshl_b32 {s(sT0)}, {s(sT0)}, 10")
    A(f"s_add_u32 {s(sT0)}, {s(sT0)}, {L.WO}")
    tr_addr(A, vTRA, vLANE, 0, "nat", sW, vT0, vT1, vT2, sT1)
    tr_addr(A, vTRB, vLANE, 1, "nat", sW, vT0, vT1, vT2, sT1)
    fr = vB + 16
    for ks in range(4):
        A(f"ds_read_b64_tr_b16 {v(fr + 4 * ks, 2)}, {v(vTRA)} offset:{CH + ks * 4096}")
        A(f"ds_read_b64_tr_b16 {v(fr + 4 * ks + 2, 2)}, {v(vTRB)} offset:{CH + ks * 4096}")
    for ks in range(4):
        A(f"s_waitcnt lgkmcnt({6 - 2 * ks})")
        A(f"buffer_store_dwordx4 {v(fr + 4 * ks, 4)}, {v(vL16)}, {s(SRD_WS, 4)}, {s(sT0)} offen")
        if ks < 3:
            A(f"s_add_u32 {s(sT0)}, {s(sT0)}, 5120")


def gen(A):
    kernel_head(A, NAME)
    entry(A, 256, "k0_end")
    dbg_stamp(A, 0, 0, sW)
    st = Stamper(A, 0, SRD_WS, sW)
    st.real("t_in")
    st.clk("in")
    code_prefetch(A, NAME, "all_code_end", 84, 120, 122, 88)
    for srd, ka in ((SRD_X, KA_X), (SRD_WQKV, KA_WQKV), (SRD_WO, KA_WO), (SRD_C, KA_C), (SRD_WMOD, KA_WMOD), (SRD_WS, KA_WS)):
        load_ptr(A, srd, ka)
    wave_id(A, sW, vT0, vLANE)
    A(f"v_lshlrev_b32 {v(vL16)}, 4, {v(vLANE)}")
    for srd, sz in ((SRD_X, SZ_X), (SRD_WQKV, SZ_WQKV), (SRD_WO, SZ_WO), (SRD_C, SZ_C), (SRD_WMOD, SZ_WMOD), (SRD_WS, L.WS_USED)):
        srd_tail(A, srd, sz)
    A(f"s_and_b32 {s(sX)}, s2, 7")
    A(f"s_lshr_b32 {s(sSLOT)}, s2, 3")
    A(f"s_lshr_b32 {s(sT0)}, {s(sX)}, 2")
    A(f"s_add_u32 {s(sT0)}, {s(sT0)}, 8")
    A(f"s_and_b32 {s(sT1)}, {s(sX)}, 3")
    A(f"s_mov_b32 {s(sWOID)}, 63")
    A(f"s_cmp_lt_u32 {s(sSLOT)}, 20")
    A("s_cbranch_scc0 k0_dec_notC")
    A(f"s_mov_b32 {s(sTYPE)}, 0")
    A(f"s_lshl_b32 {s(sT2)}, {s(sT1)}, 2")
    A(f"s_add_u32 {s(sT2)}, {s(sT2)}, {s(sSLOT)}")
    A(f"s_sub_u32 {s(sT2)}, {s(sT2)}, 16")
    A(f"s_cmp_lt_u32 {s(sSLOT)}, 16")
    A(f"s_cselect_b32 {s(sKB)}, {s(sX)}, {s(sT0)}")
    A(f"s_cselect_b32 {s(sHP)}, {s(sSLOT)}, {s(sT2)}")
    A(f"s_lshl_b32 {s(sCOL)}, {s(sKB)}, 7")
    A(f"s_add_u32 {s(sCOL)}, {s(sCOL)}, 1280")
    A("s_branch k0_dec_done")
    A.label("k0_dec_notC", pad=False)
    A(f"s_cmp_lt_u32 {s(sSLOT)}, 25")
    A("s_cbranch_scc0 k0_dec_notD")
    A(f"s_mov_b32 {s(sTYPE)}, 1")
    A(f"s_sub_u32 {s(sT2)}, {s(sSLOT)}, 20")
    A(f"s_cmp_lt_u32 {s(sSLOT)}, 24")
    A(f"s_cselect_b32 {s(sKB)}, {s(sX)}, {s(sT0)}")
    A(f"s_cselect_b32 {s(sHP)}, {s(sT2)}, {s(sT1)}")
    A(f"s_lshl_b32 {s(sCOL)}, {s(sKB)}, 7")
    A("s_branch k0_dec_done")
    A.label("k0_dec_notD", pad=False)
    A(f"s_cmp_lt_u32 {s(sSLOT)}, 30")
    A("s_cbranch_scc0 k0_dec_none")
    A(f"s_mov_b32 {s(sTYPE)}, 2")
    A(f"s_mul_i32 {s(sWOID)}, {s(sX)}, 5")
    A(f"s_add_u32 {s(sWOID)}, {s(sWOID)}, {s(sSLOT)}")
    A(f"s_sub_u32 {s(sWOID)}, {s(sWOID)}, 25")
    A(f"s_lshl_b32 {s(sCOL)}, {s(sWOID)}, 7")
    A(f"s_add_u32 {s(sCOL)}, {s(sCOL)}, 2560")
    A("s_branch k0_dec_done")
    A.label("k0_dec_none", pad=False)
    A(f"s_mov_b32 {s(sTYPE)}, 3")
    A(f"s_lshl_b32 {s(sWOID)}, {s(sX)}, 1")
    A(f"s_add_u32 {s(sWOID)}, {s(sWOID)}, {s(sSLOT)}")
    A(f"s_add_u32 {s(sWOID)}, {s(sWOID)}, 10")
    A.label("k0_dec_done", pad=False)
    A("s_waitcnt lgkmcnt(0)")
    A(f"s_cmp_lt_u32 {s(sW)}, 2")
    A("s_cbranch_scc0 k0_early_silu")
    xhat_loads(A)
    A("s_branch k0_early_done")
    A.label("k0_early_silu", pad=False)
    silu_job(A)
    A.label("k0_early_done", pad=False)
    A(f"s_cmp_eq_u32 {s(sTYPE)}, 3")
    A("s_cbranch_scc1 k0_dma_none")
    strip_dma(A)
    A(f"s_cmp_eq_u32 {s(sTYPE)}, 1")
    A("s_cbranch_scc1 k0_dma_D")
    A(f"s_cmp_eq_u32 {s(sTYPE)}, 2")
    A("s_cbranch_scc1 k0_dma_B")
    chunk_dma_C(A)
    A("s_waitcnt vmcnt(24)")
    A("s_branch k0_dma_done")
    A.label("k0_dma_D", pad=False)
    chunk_dma_D(A)
    A("s_waitcnt vmcnt(36)")
    A("s_branch k0_dma_done")
    A.label("k0_dma_B", pad=False)
    chunk_dma_WO(A)
    A("s_waitcnt vmcnt(24)")
    A("s_branch k0_dma_done")
    A.label("k0_dma_none", pad=False)
    A(f"s_cmp_lt_u32 {s(sWOID)}, 50")
    A("s_cbranch_scc0 k0_dma_none2")
    chunk_dma_WO(A)
    A("s_waitcnt vmcnt(4)")
    A("s_branch k0_dma_done")
    A.label("k0_dma_none2", pad=False)
    A("s_waitcnt vmcnt(0)")
    A.label("k0_dma_done")
    st.clk("early_landed")
    A(f"s_cmp_lt_u32 {s(sW)}, 2")
    A("s_cbranch_scc0 k0_job_silu")
    xhat_compute(A)
    A("s_waitcnt vmcnt(5)")
    A("s_branch k0_job_done")
    A.label("k0_job_silu")
    silu_compute(A)
    A("s_cmp_eq_u32 s2, 0")
    A("s_cbranch_scc0 k0_job_silu2")
    pad_zero(A)
    A.label("k0_job_silu2", pad=False)
    A("s_waitcnt vmcnt(0) lgkmcnt(0)")
    A.label("k0_job_done")
    st.clk("job_done")
    A("s_barrier")
    st.clk("bar1")
    A(f"s_cmp_eq_u32 {s(sTYPE)}, 3")
    A("s_cbranch_scc1 k0_tail_none")
    gemv(A)
    st.clk("gemv")
    A(f"s_cmp_eq_u32 {s(sTYPE)}, 1")
    A("s_cbranch_scc1 k0_tail_D")
    A(f"s_cmp_eq_u32 {s(sTYPE)}, 2")
    A("s_cbranch_scc1 k0_tail_B")
    tail_C(A)
    A("s_branch k0_fin")
    A.label("k0_tail_D")
    tail_D(A)
    A("s_branch k0_fin")
    A.label("k0_tail_B")
    tail_B(A)
    A.label("k0_tail_none")
    A(f"v_lshrrev_b32 {v(vG16)}, 4, {v(vLANE)}")
    A(f"v_lshlrev_b32 {v(vG16)}, 4, {v(vG16)}")
    A(f"s_cmp_lt_u32 {s(sWOID)}, 50")
    A("s_cbranch_scc0 k0_fin")
    repack_WO(A)
    A.label("k0_fin", pad=False)
    st.clk("tail")
    if common.STAMPS:
        A("s_waitcnt vmcnt(0)")
    st.clk("drained")
    st.real("t_out")
    st.flush(vT0, vT1)
    dbg_stamp(A, 0, 1, sW)
    A.label("k0_end", pad=False)
    A("s_endpgm")
    return dict(name=NAME, grid=256, lds=LDS, vgpr=128, agpr=0)
```

```python
from common import *
import common
from core import Core
from k0 import chunk128_dma, exec_all

NAME = "k1_qkv_attn_kernel"
R = 12
RING = 0
HALO = R * 8192
SIDE = HALO + 20 * 1024
LDS = SIDE + 16384
QSTR = 528

SRD_WS, SRD_SRC = 8, 12
sWU = 16
sW, sMB, sHP = 32, 33, 34
sMAIN, sHALO, sM0M, sM0H, sP = 35, 36, 37, 38, 39
sT0, sT1, sT2, sT3, sT4 = 40, 41, 42, 43, 44
sSRC, sSM0, sUTL, sDST, sUTS = 45, 46, 47, 48, 49
sMASK = 50
sOF = 64
vLANE, vL16, vL16H, vT0, vT1, vT2, vT3 = 1, 2, 3, 4, 5, 6, 7
vCHK, vUT, vTRA, vTRB, vG16 = 8, 9, 10, 11, 12
vACC = 16
vS = 88
vT1V = 160
vUTF = 168
vUTR = 184
vSF = 216
vUACC = 232


def acc(p, f):
    return vACC + (p * 9 + f) * 4


class K1Core(Core):
    def stage_loads(self, ks):
        A, vq = self.A, self.vq
        out = []
        tag = ("st", ks)
        if ks % 4 == 0:
            def halo():
                A(f"s_add_u32 m0, {s(sM0H)}, {ks * 1024}")
                A(f"s_add_u32 {s(sT0)}, {s(sHALO)}, {ks * 129 * 1024}")
                vq.issue(f"buffer_load_dwordx4 {v(vL16)}, {s(SRD_WS, 4)}, {s(sT0)} offen lds", tag)
            out.append(halo)

        def main0():
            A(f"s_add_u32 m0, {s(sM0M)}, {(ks % R) * 8192}")
            A(f"s_add_u32 {s(sT0)}, {s(sMAIN)}, {ks * 129 * 1024}")
            vq.issue(f"buffer_load_dwordx4 {v(vL16)}, {s(SRD_WS, 4)}, {s(sT0)} offen lds", tag)

        def main1():
            vq.issue(f"buffer_load_dwordx4 {v(vL16)}, {s(SRD_WS, 4)}, {s(sT0)} offen offset:1024 lds", tag)

        def p0():
            A(f"s_add_u32 {s(sT1)}, {s(sP)}, {ks * 8192}")
            vq.issue(f"buffer_load_dwordx4 {a((ks * 2) * 4, 4)}, {v(vL16)}, {s(SRD_WS, 4)}, {s(sT1)} offen", tag)

        def p1():
            vq.issue(f"buffer_load_dwordx4 {a((ks * 2 + 1) * 4, 4)}, {v(vL16)}, {s(SRD_WS, 4)}, {s(sT1)} offen offset:1024", tag)
        out += [main0, main1, p0, p1]
        return out

    def step_reads(self, ks):
        out = []
        for f in range(9):
            addr = HALO + ks * 1024 if f == 0 else RING + (ks % R) * 8192 + (f - 1) * 1024
            reg, off = (vL16, addr) if addr < 65536 else (vL16H, addr - 65536)
            out.append(f"ds_read_b128 {v(vS + (ks & 1) * 36 + 4 * f, 4)}, {v(reg)} offset:{off}")
        return out

    def step_mfmas(self, ks):
        out = []
        for f in range(9):
            for p in range(2):
                c = v(vT1V + 4 * p, 4) if ks == 0 else v(acc(p, f), 4)
                out.append(f"v_mfma_f32_16x16x32_bf16 {v(acc(p, f), 4)}, {a((ks * 2 + p) * 4, 4)}, {v(vS + (ks & 1) * 36 + 4 * f, 4)}, {c}")
        return out

    def extra_fill(self, ks):
        A, vq = self.A, self.vq
        if ks != 8:
            return []
        out = []
        for u in range(4):
            def dma(u=u):
                A(f"s_add_u32 m0, {s(sSM0)}, {u * 4096}")
                A(f"s_add_u32 {s(sT2)}, {s(sSRC)}, {u * 32 * 3072}")
                vq.issue(f"buffer_load_dwordx4 {v(vCHK)}, {s(SRD_SRC, 4)}, {s(sT2)} offen nt lds", ("side", 0))
            out.append(dma)
        for ks4 in range(4):
            for h in range(2):
                def ld(ks4=ks4, h=h):
                    vq.issue(f"buffer_load_dwordx4 {v(vUTR + 8 * ks4 + 4 * h, 4)}, {v(vUT)}, {s(SRD_WS, 4)}, {s(sUTL)} offen offset:{ks4 * 128 + h * 64}", ("side", 1))
                out.append(ld)
        return out


def side_setup(A):
    A(f"s_min_u32 {s(sT0)}, s2, 239")
    A(f"s_cmp_ge_u32 {s(sT0)}, 120")
    A(f"s_cselect_b32 {s(sT4)}, 1, 0")
    A(f"s_cselect_b32 {s(SRD_SRC)}, {s(sWU)}, {s(SRD_SRC)}")
    A(f"s_cselect_b32 {s(SRD_SRC + 1)}, {s(sWU + 1)}, {s(SRD_SRC + 1)}")
    A(f"s_mul_i32 {s(sT1)}, {s(sT4)}, 120")
    A(f"s_sub_u32 {s(sT0)}, {s(sT0)}, {s(sT1)}")
    A(f"s_mul_i32 {s(sT1)}, {s(sT0)}, 43")
    A(f"s_lshr_b32 {s(sT1)}, {s(sT1)}, 10")
    A(f"s_mul_i32 {s(sT2)}, {s(sT1)}, 24")
    A(f"s_sub_u32 {s(sT2)}, {s(sT0)}, {s(sT2)}")
    swz_src_chunk(A, vT0, vLANE, sW, vT1, sT3)
    A(f"v_lshrrev_b32 {v(vT1)}, 3, {v(vLANE)}")
    A(f"v_mul_u32_u24 {v(vCHK)}, 3072, {v(vT1)}")
    A(f"v_lshl_add_u32 {v(vCHK)}, {v(vT0)}, 4, {v(vCHK)}")
    A(f"s_lshl_b32 {s(sSRC)}, {s(sT1)}, 4")
    A(f"s_add_u32 {s(sSRC)}, {s(sSRC)}, {s(sW)}")
    A(f"s_mul_i32 {s(sSRC)}, {s(sSRC)}, {8 * 3072}")
    A(f"s_lshl_b32 {s(sT3)}, {s(sT2)}, 7")
    A(f"s_add_u32 {s(sSRC)}, {s(sSRC)}, {s(sT3)}")
    A("s_cmp_lt_u32 s2, 240")
    A(f"s_cselect_b32 {s(sSRC)}, {s(sSRC)}, 0x40000000")
    A(f"s_lshl_b32 {s(sSM0)}, {s(sW)}, 10")
    A(f"s_add_u32 {s(sSM0)}, {s(sSM0)}, {SIDE}")
    A(f"v_and_b32 {v(vT0)}, 1, {v(vLANE)}")
    A(f"v_mul_u32_u24 {v(vT0)}, 2560, {v(vT0)}")
    A(f"v_sub_u32 {v(vUT)}, 5120, {v(vT0)}")
    A(f"v_add_u32 {v(vUT)}, {v(vUT)}, {v(vG16)}")
    A(f"s_lshl_b32 {s(sUTL)}, {s(sT1)}, 9")
    A(f"s_add_u32 {s(sUTL)}, {s(sUTL)}, {L.MOD}")
    A(f"s_lshl_b32 {s(sT2)}, {s(sT2)}, 2")
    A(f"s_add_u32 {s(sT2)}, {s(sT2)}, {s(sW)}")
    A(f"s_mul_i32 {s(sT0)}, {s(sT2)}, 43")
    A(f"s_lshr_b32 {s(sT0)}, {s(sT0)}, 8")
    A(f"s_mul_i32 {s(sT3)}, {s(sT0)}, 6")
    A(f"s_sub_u32 {s(sT3)}, {s(sT2)}, {s(sT3)}")
    A(f"s_mul_i32 {s(sT0)}, {s(sT0)}, 20")
    A(f"s_lshl_b32 {s(sDST)}, {s(sT1)}, 2")
    A(f"s_add_u32 {s(sT0)}, {s(sT0)}, {s(sDST)}")
    A(f"s_mul_i32 {s(sT0)}, {s(sT0)}, 12")
    A(f"s_add_u32 {s(sT0)}, {s(sT0)}, {s(sT3)}")
    A(f"s_mul_i32 {s(sT3)}, {s(sT4)}, 6")
    A(f"s_add_u32 {s(sT0)}, {s(sT0)}, {s(sT3)}")
    A(f"s_lshl_b32 {s(sT0)}, {s(sT0)}, 10")
    A(f"s_add_u32 {s(sDST)}, {s(sT0)}, {L.WGU}")
    A(f"s_mul_i32 {s(sT0)}, {s(sT1)}, {2 * 3072 * 4}")
    A(f"s_mul_i32 {s(sT3)}, {s(sT4)}, {1536 * 4}")
    A(f"s_add_u32 {s(sT0)}, {s(sT0)}, {s(sT3)}")
    A(f"s_lshl_b32 {s(sT3)}, {s(sT2)}, 6")
    A(f"s_add_u32 {s(sT0)}, {s(sT0)}, {s(sT3)}")
    A(f"s_add_u32 {s(sUTS)}, {s(sT0)}, {L.UT2}")
    tr_addr(A, vTRA, vLANE, 0, "split", sW, vT0, vT1, vT2, sT0)
    tr_addr(A, vTRB, vLANE, 1, "split", sW, vT0, vT1, vT2, sT0)


def side_finish(A, vq):
    vq.wait(lambda t: t[0] == "side")
    A("s_barrier")
    A("s_cmp_lt_u32 s2, 240")
    A("s_cbranch_scc0 k1_side_done")
    for ks in range(4):
        A(f"ds_read_b64_tr_b16 {v(vSF + 4 * ks, 2)}, {v(vTRA)} offset:{ks * 4096}")
        A(f"ds_read_b64_tr_b16 {v(vSF + 4 * ks + 2, 2)}, {v(vTRB)} offset:{ks * 4096}")
    for ks in range(4):
        for q in range(4):
            A(f"v_cvt_pk_bf16_f32 {v(vUTF + 4 * ks + q)}, {v(vUTR + 8 * ks + 2 * q)}, {v(vUTR + 8 * ks + 2 * q + 1)}")
    for ks in range(4):
        A(f"s_waitcnt lgkmcnt({6 - 2 * ks})")
        vq.issue(f"buffer_store_dwordx4 {v(vSF + 4 * ks, 4)}, {v(vL16)}, {s(SRD_WS, 4)}, {s(sDST)} offen", ("sst", ks))
        if ks < 3:
            A(f"s_add_u32 {s(sDST)}, {s(sDST)}, {12 * 1024}")
        c = v(vUACC, 4) if ks else "0"
        A(f"v_mfma_f32_16x16x32_bf16 {v(vUACC, 4)}, {v(vSF + 4 * ks, 4)}, {v(vUTF + 4 * ks, 4)}, {c}")
    A(f"v_and_b32 {v(vT0)}, 1, {v(vLANE)}")
    A(f"v_mul_u32_u24 {v(vT0)}, {3072 * 4}, {v(vT0)}")
    A(f"v_add_u32 {v(vT0)}, {v(vT0)}, {v(vG16)}")
    A("s_mov_b32 exec_lo, 0x00030003")
    A("s_mov_b32 exec_hi, 0x00030003")
    vq.issue(f"buffer_store_dwordx4 {v(vUACC, 4)}, {v(vT0)}, {s(SRD_WS, 4)}, {s(sUTS)} offen", ("sst", 4))
    exec_all(A)
    A.label("k1_side_done")


def attention(A, vq):
    vWR, vWR2, vRD, vTOK, vOO = vT0, vT1, vT2, vT3, vCHK
    A(f"v_and_b32 {v(vWR)}, 15, {v(vLANE)}")
    A(f"v_mul_u32_u24 {v(vWR)}, {QSTR}, {v(vWR)}")
    A(f"v_add_u32 {v(vWR)}, {v(vWR)}, {v(vG16)}")
    A(f"s_lshl_b32 {s(sT0)}, {s(sW)}, 7")
    A(f"v_add_u32 {v(vWR)}, {s(sT0)}, {v(vWR)}")
    A(f"v_add_u32 {v(vWR2)}, {4 * 16 * QSTR}, {v(vWR)}")
    A(f"s_and_b32 {s(sT0)}, {s(sW)}, 1")
    A(f"s_lshl_b32 {s(sT0)}, {s(sT0)}, 6")
    A(f"v_add_u32 {v(vTOK)}, {s(sT0)}, {v(vLANE)}")
    A(f"v_add_u32 {v(vRD)}, 2, {v(vTOK)}")
    A(f"v_mul_u32_u24 {v(vRD)}, {QSTR}, {v(vRD)}")
    A(f"s_lshr_b32 {s(sT1)}, {s(sW)}, 1")
    A(f"s_mul_i32 {s(sT2)}, {s(sT1)}, 80")
    A(f"v_add_u32 {v(vRD)}, {s(sT2)}, {v(vRD)}")
    A(f"v_lshrrev_b32 {v(vOO)}, 4, {v(vTOK)}")
    A(f"v_mul_u32_u24 {v(vOO)}, 20480, {v(vOO)}")
    A(f"v_and_b32 {v(vTRA)}, 15, {v(vTOK)}")
    A(f"v_lshl_add_u32 {v(vOO)}, {v(vTRA)}, 4, {v(vOO)}")
    A(f"s_mul_i32 {s(sT2)}, {s(sHP)}, 10")
    A(f"s_mul_i32 {s(sT1)}, {s(sT1)}, 5")
    A(f"s_add_u32 {s(sT2)}, {s(sT2)}, {s(sT1)}")
    A(f"s_mul_i32 {s(sT3)}, {s(sMB)}, {8 * 20480}")
    A(f"s_add_u32 {s(sT3)}, {s(sT3)}, {L.OF}")
    for qd in range(5):
        A(f"s_add_u32 {s(sT0)}, {s(sT2)}, {qd}")
        A(f"s_lshr_b32 {s(sT1)}, {s(sT0)}, 1")
        A(f"s_lshl_b32 {s(sT1)}, {s(sT1)}, 8")
        A(f"s_and_b32 {s(sT0)}, {s(sT0)}, 1")
        A(f"s_lshl_b32 {s(sT0)}, {s(sT0)}, 3")
        A(f"s_add_u32 {s(sT0)}, {s(sT0)}, {s(sT1)}")
        A(f"s_add_u32 {s(sOF + qd)}, {s(sT0)}, {s(sT3)}")
    A(f"s_lshl_b32 {s(sT0)}, {s(sMB)}, 7")
    A(f"v_add_u32 {v(vTOK)}, {s(sT0)}, {v(vTOK)}")
    for w8 in range(1, 8):
        A(f"v_cmp_le_u32 {s(sMASK + 2 * (w8 - 1), 2)}, {2 * w8}, {v(vTOK)}")
    for f in range(9):
        for p in range(2):
            reg, off = (vWR, f * 16 * QSTR + p * 64) if f < 4 else (vWR2, (f - 4) * 16 * QSTR + p * 64)
            A(f"ds_write_b128 {v(reg)}, {v(acc(p, f), 4)} offset:{off}")
    A("s_waitcnt lgkmcnt(0)")
    A("s_barrier")
    q = 16
    kb = [36, 56, 76]
    lg = 96
    o = 112
    e = 132
    vM, vSUM = 148, 150
    lq = LgQ(A)

    def rd_row(dst, off, tag):
        for c in range(5):
            lq.issue(f"ds_read_b128 {v(dst + 4 * c, 4)}, {v(vRD)} offset:{off + 16 * c}", tag)
    koff = lambda w8: (14 - 2 * w8) * QSTR + 160
    voff = lambda w8: (14 - 2 * w8) * QSTR + 320
    rd_row(q, 14 * QSTR, "q")
    rd_row(kb[0], koff(0), ("k", 0))
    rd_row(kb[1], koff(1), ("k", 1))
    for w8 in range(8):
        lq.wait(lambda t: t == "q" or (t[0] == "k" and t[1] <= w8))
        if w8 + 2 < 8:
            rd_row(kb[(w8 + 2) % 3], koff(w8 + 2), ("k", w8 + 2))
        elif w8 + 2 - 8 < 2:
            rd_row(kb[(w8 + 2) % 3], voff(w8 + 2 - 8), ("v", w8 + 2 - 8))
        k = kb[w8 % 3]
        L0 = lg + 2 * w8
        A(f"v_pk_mul_f32 {v(L0, 2)}, {v(q, 2)}, {v(k, 2)}")
        A(f"v_pk_mul_f32 {v(vM, 2)}, {v(q + 2, 2)}, {v(k + 2, 2)}")
        for c in range(2, 10, 2):
            A(f"v_pk_fma_f32 {v(L0, 2)}, {v(q + 2 * c, 2)}, {v(k + 2 * c, 2)}, {v(L0, 2)}")
            A(f"v_pk_fma_f32 {v(vM, 2)}, {v(q + 2 * c + 2, 2)}, {v(k + 2 * c + 2, 2)}, {v(vM, 2)}")
        A(f"v_pk_add_f32 {v(L0, 2)}, {v(L0, 2)}, {v(vM, 2)}")
        A(f"v_add_f32 {v(L0)}, {v(L0)}, {v(L0 + 1)}")
    A(f"s_cmp_lg_u32 {s(sMB)}, 0")
    A("s_cbranch_scc1 k1_nomask")
    A(f"v_mov_b32 {v(vM)}, {hexf(-1e30)}")
    for w8 in range(1, 8):
        A(f"v_cndmask_b32 {v(lg + 2 * w8)}, {v(vM)}, {v(lg + 2 * w8)}, {s(sMASK + 2 * (w8 - 1), 2)}")
    A.label("k1_nomask", pad=False)
    A("s_nop 1")
    l = lambda w8: lg + 2 * w8
    A(f"v_max3_f32 {v(vM)}, {v(l(0))}, {v(l(1))}, {v(l(2))}")
    A(f"v_max3_f32 {v(vM)}, {v(vM)}, {v(l(3))}, {v(l(4))}")
    A(f"v_max3_f32 {v(vM)}, {v(vM)}, {v(l(5))}, {v(l(6))}")
    A(f"v_max_f32 {v(vM)}, {v(vM)}, {v(l(7))}")
    cs = 20 ** -0.5 * LOG2E
    A(f"s_mov_b32 {s(sT0)}, {hexf(cs)}")
    A(f"v_mul_f32 {v(vM)}, {hexf(-cs)}, {v(vM)}")
    for w8 in range(8):
        A(f"v_fma_f32 {v(l(w8))}, {v(l(w8))}, {s(sT0)}, {v(vM)}")
    for w8 in range(8):
        A(f"v_exp_f32 {v(l(w8))}, {v(l(w8))}")
    A(f"v_add_f32 {v(vSUM)}, {v(l(0))}, {v(l(1))}")
    A(f"v_add_f32 {v(vSUM + 1)}, {v(l(2))}, {v(l(3))}")
    A(f"v_add_f32 {v(vM)}, {v(l(4))}, {v(l(5))}")
    A(f"v_add_f32 {v(vM + 1)}, {v(l(6))}, {v(l(7))}")
    A(f"v_pk_add_f32 {v(vSUM, 2)}, {v(vSUM, 2)}, {v(vM, 2)}")
    A(f"v_add_f32 {v(vSUM)}, {v(vSUM)}, {v(vSUM + 1)}")
    A(f"v_rcp_f32 {v(vSUM)}, {v(vSUM)}")
    for w8 in range(8):
        lq.wait(lambda t: t[0] == "v" and t[1] <= w8)
        if w8 + 2 < 8:
            rd_row(kb[(8 + w8 + 2) % 3], voff(w8 + 2), ("v", w8 + 2))
        vv = kb[(8 + w8) % 3]
        for c in range(10):
            if w8 == 0:
                A(f"v_pk_mul_f32 {v(o + 2 * c, 2)}, {v(vv + 2 * c, 2)}, {v(l(w8), 2)} op_sel_hi:[1,0]")
            else:
                A(f"v_pk_fma_f32 {v(o + 2 * c, 2)}, {v(vv + 2 * c, 2)}, {v(l(w8), 2)}, {v(o + 2 * c, 2)} op_sel_hi:[1,0,1]")
    for c in range(10):
        A(f"v_pk_mul_f32 {v(o + 2 * c, 2)}, {v(o + 2 * c, 2)}, {v(vSUM, 2)} op_sel_hi:[1,0]")
    for c in range(10):
        A(f"v_cvt_pk_bf16_f32 {v(q + c)}, {v(o + 2 * c)}, {v(o + 2 * c + 1)}")
    for qd in range(5):
        vq.issue(f"buffer_store_dwordx2 {v(q + 2 * qd, 2)}, {v(vOO)}, {s(SRD_WS, 4)}, {s(sOF + qd)} offen", ("o", qd))


def gen(A):
    kernel_head(A, NAME)
    entry(A, 256, "k1_end")
    dbg_stamp(A, 1, 0, sW)
    st = Stamper(A, 1, SRD_WS, sW)
    st.real("t_in")
    st.clk("in")
    load_ptr(A, SRD_WS, KA_WS)
    load_ptr(A, SRD_SRC, KA_WG)
    load_ptr(A, sWU, KA_WU)
    wave_id(A, sW, vT0, vLANE)
    A(f"v_lshlrev_b32 {v(vL16)}, 4, {v(vLANE)}")
    A(f"v_add_u32 {v(vL16H)}, 0x10000, {v(vL16)}")
    A(f"v_lshrrev_b32 {v(vG16)}, 4, {v(vLANE)}")
    A(f"v_lshlrev_b32 {v(vG16)}, 4, {v(vG16)}")
    srd_tail(A, SRD_WS, L.WS_USED)
    srd_tail(A, SRD_SRC, SZ_WG)
    A(f"s_and_b32 {s(sT0)}, s2, 7")
    A(f"s_lshr_b32 {s(sT1)}, s2, 3")
    A(f"s_lshr_b32 {s(sMB)}, {s(sT0)}, 1")
    A(f"s_lshl_b32 {s(sMB)}, {s(sMB)}, 2")
    A(f"s_lshr_b32 {s(sT2)}, {s(sT1)}, 3")
    A(f"s_add_u32 {s(sMB)}, {s(sMB)}, {s(sT2)}")
    A(f"s_and_b32 {s(sHP)}, {s(sT0)}, 1")
    A(f"s_lshl_b32 {s(sHP)}, {s(sHP)}, 3")
    A(f"s_and_b32 {s(sT2)}, {s(sT1)}, 7")
    A(f"s_add_u32 {s(sHP)}, {s(sHP)}, {s(sT2)}")
    A(f"s_lshl_b32 {s(sT0)}, {s(sMB)}, 3")
    A(f"s_lshl_b32 {s(sT1)}, {s(sW)}, 1")
    A(f"s_add_u32 {s(sMAIN)}, {s(sT0)}, {s(sT1)}")
    A(f"s_add_u32 {s(sMAIN)}, {s(sMAIN)}, 1")
    A(f"s_lshl_b32 {s(sMAIN)}, {s(sMAIN)}, 10")
    A(f"s_mul_i32 {s(sHALO)}, {s(sW)}, 129")
    A(f"s_add_u32 {s(sHALO)}, {s(sHALO)}, {s(sT0)}")
    A(f"s_lshl_b32 {s(sHALO)}, {s(sHALO)}, 10")
    if L.XH:
        A(f"s_add_u32 {s(sMAIN)}, {s(sMAIN)}, {L.XH}")
        A(f"s_add_u32 {s(sHALO)}, {s(sHALO)}, {L.XH}")
    A(f"s_lshl_b32 {s(sM0M)}, {s(sW)}, 11")
    if RING:
        A(f"s_add_u32 {s(sM0M)}, {s(sM0M)}, {RING}")
    A(f"s_lshl_b32 {s(sM0H)}, {s(sW)}, 10")
    A(f"s_add_u32 {s(sM0H)}, {s(sM0H)}, {HALO}")
    A(f"s_mul_i32 {s(sP)}, {s(sHP)}, 160")
    A(f"s_add_u32 {s(sP)}, {s(sP)}, {s(sT1)}")
    A(f"s_lshl_b32 {s(sP)}, {s(sP)}, 10")
    A(f"s_add_u32 {s(sP)}, {s(sP)}, {L.WQ}")
    A(f"v_and_b32 {v(vT0)}, 15, {v(vLANE)}")
    A(f"v_lshlrev_b32 {v(vT1)}, 13, {v(vT0)}")
    A(f"v_add_u32 {v(vT1)}, {v(vT1)}, {v(vG16)}")
    A(f"v_mov_b32 {v(vT2)}, 0x40000000")
    A(f"v_cmp_gt_u32 vcc, 10, {v(vT0)}")
    A(f"v_cndmask_b32 {v(vT1)}, {v(vT2)}, {v(vT1)}, vcc")
    A(f"s_lshl_b32 {s(sT0)}, {s(sHP)}, 9")
    A(f"s_lshl_b32 {s(sT1)}, {s(sW)}, 7")
    A(f"s_add_u32 {s(sT0)}, {s(sT0)}, {s(sT1)}")
    A(f"s_add_u32 {s(sT0)}, {s(sT0)}, {L.T1}")
    A("s_waitcnt lgkmcnt(0)")
    vq = VmQ(A)
    for p in range(2):
        vq.issue(f"buffer_load_dwordx4 {v(vT1V + 4 * p, 4)}, {v(vT1)}, {s(SRD_WS, 4)}, {s(sT0)} offen offset:{64 * p}", ("t1", p))
    core = K1Core(A, vq, 20, 1, R)
    core.prologue_loads()
    st.clk("issued")
    side_setup(A)
    A(f"v_add_u32 {v(vTRA)}, {SIDE}, {v(vTRA)}")
    A(f"v_add_u32 {v(vTRB)}, {SIDE}, {v(vTRB)}")
    vq.wait(lambda t: t[0] == "t1")
    for n in (8, 4, 2, 1):
        for r in range(8):
            A(f"v_add_f32_dpp {v(vT1V + r)}, {v(vT1V + r)}, {v(vT1V + r)} row_ror:{n} row_mask:0xf bank_mask:0xf")
    core.run(before_first=lambda: st.clk("stage0"))
    st.clk("main")
    side_finish(A, vq)
    st.clk("side")
    attention(A, vq)
    st.clk("attn")
    if common.STAMPS:
        A("s_waitcnt vmcnt(0)")
    st.clk("drained")
    st.real("t_out")
    st.flush(vT0, vT1)
    dbg_stamp(A, 1, 1, sW)
    A.label("k1_end", pad=False)
    A("s_endpgm")
    return dict(name=NAME, grid=256, lds=LDS, vgpr=240, agpr=160)
```

```python
from common import *
import common
from core import Core
from k0 import exec_all

SRD_WS, SRD_X, SRD_SRC = 8, 12, 16
sW, sMB, sJ = 32, 33, 34
sS, sM0, sP = 35, 36, 37
sT0, sT1, sT2, sT3, sT4 = 40, 41, 42, 43, 44
sSRC, sSM0, sDST = 45, 46, 47
sO = 50
vLANE, vL16, vL16H, vT0, vT1, vT2, vT3 = 1, 2, 3, 4, 5, 6, 7
vCHK, vG16, vTRA, vTRB, vXO, vL8 = 8, 9, 10, 11, 12, 13
vACC = 16
vS = 40
vXR = 120
vGA = 132
vC1 = 152
vW = 172


class WCore(Core):
    def __init__(self, A, vq, KS, R):
        super().__init__(A, vq, KS // 2, 2, R)
        self.KS = KS

    def stage_loads(self, st):
        A, vq, R = self.A, self.vq, self.R
        tag = ("st", st)
        out = []

        def s0():
            A(f"s_add_u32 m0, {s(sM0)}, {(st % R) * 20480}")
            A(f"s_add_u32 {s(sT0)}, {s(sS)}, {st * 20480}")
            vq.issue(f"buffer_load_dwordx4 {v(vL16)}, {s(SRD_WS, 4)}, {s(sT0)} offen lds", tag)
        out.append(s0)
        for u in range(1, 4):
            out.append(lambda u=u: vq.issue(f"buffer_load_dwordx4 {v(vL16)}, {s(SRD_WS, 4)}, {s(sT0)} offen offset:{1024 * u} lds", tag))

        def s4():
            A(f"s_add_u32 m0, {s(sM0)}, {(st % R) * 20480 + 4096}")
            A(f"s_add_u32 {s(sT0)}, {s(sS)}, {st * 20480 + 4096}")
            vq.issue(f"buffer_load_dwordx4 {v(vL16)}, {s(SRD_WS, 4)}, {s(sT0)} offen lds", tag)
        out.append(s4)

        def p0():
            A(f"s_add_u32 {s(sT1)}, {s(sP)}, {st * 4096}")
            vq.issue(f"buffer_load_dwordx4 {a(st * 16, 4)}, {v(vL16)}, {s(SRD_WS, 4)}, {s(sT1)} offen", tag)
        out.append(p0)
        for u in range(1, 4):
            out.append(lambda u=u: vq.issue(f"buffer_load_dwordx4 {a(st * 16 + 4 * u, 4)}, {v(vL16)}, {s(SRD_WS, 4)}, {s(sT1)} offen offset:{1024 * u}", tag))
        return out

    def step_reads(self, k):
        out = []
        for kk in range(2):
            ks = 2 * k + kk
            st, w = divmod(ks, 4)
            for t in range(5):
                addr = (st % self.R) * 20480 + w * 5120 + t * 1024
                reg, off = (vL16, addr) if addr < 65536 else (vL16H, addr - 65536)
                out.append(f"ds_read_b128 {v(vS + (k & 1) * 40 + 20 * kk + 4 * t, 4)}, {v(reg)} offset:{off}")
        return out

    def step_mfmas(self, k):
        out = []
        for kk in range(2):
            ks = 2 * k + kk
            for t in range(5):
                c = "0" if ks == 0 else v(vACC + 4 * t, 4)
                out.append(f"v_mfma_f32_16x16x32_bf16 {v(vACC + 4 * t, 4)}, {v(vS + (k & 1) * 40 + 20 * kk + 4 * t, 4)}, {a(ks * 4, 4)}, {c}")
        return out


def prolog_common(A, KS, wbase, pbase):
    wave_id(A, sW, vT0, vLANE)
    A(f"v_lshlrev_b32 {v(vL16)}, 4, {v(vLANE)}")
    A(f"v_add_u32 {v(vL16H)}, 0x10000, {v(vL16)}")
    A(f"v_lshrrev_b32 {v(vG16)}, 4, {v(vLANE)}")
    A(f"v_lshlrev_b32 {v(vG16)}, 4, {v(vG16)}")
    A(f"v_lshlrev_b32 {v(vL8)}, 3, {v(vLANE)}")
    A(f"s_and_b32 {s(sT0)}, s2, 7")
    A(f"s_lshr_b32 {s(sT1)}, s2, 3")
    A(f"s_lshr_b32 {s(sMB)}, {s(sT0)}, 1")
    A(f"s_lshl_b32 {s(sMB)}, {s(sMB)}, 3")
    A(f"s_lshr_b32 {s(sT2)}, {s(sT1)}, 2")
    A(f"s_add_u32 {s(sMB)}, {s(sMB)}, {s(sT2)}")
    A(f"s_and_b32 {s(sJ)}, {s(sT0)}, 1")
    A(f"s_lshl_b32 {s(sJ)}, {s(sJ)}, 2")
    A(f"s_and_b32 {s(sT2)}, {s(sT1)}, 3")
    A(f"s_add_u32 {s(sJ)}, {s(sJ)}, {s(sT2)}")
    A(f"s_mul_i32 {s(sS)}, {s(sJ)}, {KS * 5120}")
    A(f"s_mul_i32 {s(sM0)}, {s(sW)}, 5120")
    A(f"s_add_u32 {s(sS)}, {s(sS)}, {s(sM0)}")
    A(f"s_add_u32 {s(sS)}, {s(sS)}, {wbase}")
    A(f"s_lshl_b32 {s(sP)}, {s(sMB)}, 2")
    A(f"s_add_u32 {s(sP)}, {s(sP)}, {s(sW)}")
    A(f"s_mul_i32 {s(sP)}, {s(sP)}, {KS * 1024}")
    A(f"s_add_u32 {s(sP)}, {s(sP)}, {pbase}")


def rowmajor_voff(A, vdst):
    A(f"v_and_b32 {v(vdst)}, 15, {v(vLANE)}")
    A(f"v_mul_u32_u24 {v(vdst)}, 1280, {v(vdst)}")
    A(f"v_lshrrev_b32 {v(vT0)}, 1, {v(vG16)}")
    A(f"v_add_u32 {v(vdst)}, {v(vdst)}, {v(vT0)}")


def rowmajor_soff(A, sdst):
    A(f"s_lshl_b32 {s(sdst)}, {s(sMB)}, 2")
    A(f"s_add_u32 {s(sdst)}, {s(sdst)}, {s(sW)}")
    A(f"s_mul_i32 {s(sdst)}, {s(sdst)}, {16 * 1280}")
    A(f"s_mul_i32 {s(sT3)}, {s(sJ)}, 160")
    A(f"s_add_u32 {s(sdst)}, {s(sdst)}, {s(sT3)}")


def x1_soff(A, sdst):
    A(f"s_lshl_b32 {s(sdst)}, {s(sMB)}, 3")
    A(f"s_add_u32 {s(sdst)}, {s(sdst)}, {s(sJ)}")
    A(f"s_lshl_b32 {s(sdst)}, {s(sdst)}, 2")
    A(f"s_add_u32 {s(sdst)}, {s(sdst)}, {s(sW)}")
    A(f"s_mul_i32 {s(sdst)}, {s(sdst)}, 2560")
    A(f"s_add_u32 {s(sdst)}, {s(sdst)}, {L.X1}")


def mod_loads(A, vq, dst, which, tag):
    A(f"s_mul_i32 {s(sT2)}, {s(sJ)}, 320")
    A(f"s_add_u32 {s(sT2)}, {s(sT2)}, {L.MOD + which * 2560}")
    for t in range(5):
        vq.issue(f"buffer_load_dwordx4 {v(dst + 4 * t, 4)}, {v(vG16)}, {s(SRD_WS, 4)}, {s(sT2)} offen offset:{64 * t}", tag)


def unpack4(A, dst, src):
    A(f"v_lshlrev_b32 {v(dst)}, 16, {v(src)}")
    A(f"v_and_b32 {v(dst + 1)}, 0xffff0000, {v(src)}")
    A(f"v_lshlrev_b32 {v(dst + 2)}, 16, {v(src + 1)}")
    A(f"v_and_b32 {v(dst + 3)}, 0xffff0000, {v(src + 1)}")


def xlane_sum_g(A, r, t):
    A(f"v_mov_b32 {v(t)}, {v(r)}")
    A(f"v_permlane32_swap_b32 {v(r)}, {v(t)}")
    A(f"v_add_f32 {v(r)}, {v(r)}, {v(t)}")
    A(f"v_mov_b32 {v(t)}, {v(r)}")
    A(f"v_permlane16_swap_b32 {v(r)}, {v(t)}")
    A(f"v_add_f32 {v(r)}, {v(r)}, {v(t)}")


K2_NAME = "k2_wo_kernel"
K2_SIDE = 5 * 20480
K2_LDS = K2_SIDE + 16384


def k2_side_setup(A):
    A(f"s_min_u32 {s(sT0)}, s2, 119")
    A(f"s_mul_i32 {s(sT1)}, {s(sT0)}, 205")
    A(f"s_lshr_b32 {s(sT1)}, {s(sT1)}, 11")
    A(f"s_mul_i32 {s(sT2)}, {s(sT1)}, 10")
    A(f"s_sub_u32 {s(sT2)}, {s(sT0)}, {s(sT2)}")
    swz_src_chunk(A, vT0, vLANE, sW, vT1, sT3)
    A(f"v_lshrrev_b32 {v(vT1)}, 3, {v(vLANE)}")
    A(f"v_mul_u32_u24 {v(vCHK)}, 1280, {v(vT1)}")
    A(f"v_lshl_add_u32 {v(vCHK)}, {v(vT0)}, 4, {v(vCHK)}")
    A(f"s_lshl_b32 {s(sSRC)}, {s(sT1)}, 4")
    A(f"s_add_u32 {s(sSRC)}, {s(sSRC)}, {s(sW)}")
    A(f"s_mul_i32 {s(sSRC)}, {s(sSRC)}, {8 * 1280}")
    A(f"s_lshl_b32 {s(sT3)}, {s(sT2)}, 7")
    A(f"s_add_u32 {s(sSRC)}, {s(sSRC)}, {s(sT3)}")
    A("s_cmp_lt_u32 s2, 120")
    A(f"s_cselect_b32 {s(sSRC)}, {s(sSRC)}, 0x40000000")
    A(f"s_lshl_b32 {s(sSM0)}, {s(sW)}, 10")
    A(f"s_add_u32 {s(sSM0)}, {s(sSM0)}, {K2_SIDE}")
    A(f"s_lshl_b32 {s(sT2)}, {s(sT2)}, 2")
    A(f"s_add_u32 {s(sT2)}, {s(sT2)}, {s(sW)}")
    A(f"s_mul_i32 {s(sT0)}, {s(sT2)}, 205")
    A(f"s_lshr_b32 {s(sT0)}, {s(sT0)}, 10")
    A(f"s_mul_i32 {s(sT3)}, {s(sT0)}, 5")
    A(f"s_sub_u32 {s(sT3)}, {s(sT2)}, {s(sT3)}")
    A(f"s_mul_i32 {s(sT0)}, {s(sT0)}, 48")
    A(f"s_lshl_b32 {s(sT1)}, {s(sT1)}, 2")
    A(f"s_add_u32 {s(sT0)}, {s(sT0)}, {s(sT1)}")
    A(f"s_mul_i32 {s(sT0)}, {s(sT0)}, 5")
    A(f"s_add_u32 {s(sT0)}, {s(sT0)}, {s(sT3)}")
    A(f"s_lshl_b32 {s(sT0)}, {s(sT0)}, 10")
    A(f"s_add_u32 {s(sDST)}, {s(sT0)}, {L.WD}")
    tr_addr(A, vTRA, vLANE, 0, "split", sW, vT0, vT1, vT2, sT0)
    tr_addr(A, vTRB, vLANE, 1, "split", sW, vT0, vT1, vT2, sT0)
    A(f"v_add_u32 {v(vTRA)}, {K2_SIDE}, {v(vTRA)}")
    A(f"v_add_u32 {v(vTRB)}, {K2_SIDE}, {v(vTRB)}")


class K2Core(WCore):
    def extra_fill(self, k):
        A, vq = self.A, self.vq
        out = []
        if k == 2:
            for u in range(4):
                def dma(u=u):
                    A(f"s_add_u32 m0, {s(sSM0)}, {u * 4096}")
                    A(f"s_add_u32 {s(sT2)}, {s(sSRC)}, {u * 32 * 1280}")
                    vq.issue(f"buffer_load_dwordx4 {v(vCHK)}, {s(SRD_SRC, 4)}, {s(sT2)} offen nt lds", ("side", 0))
                out.append(dma)
        return out


def gen_k2(A):
    kernel_head(A, K2_NAME)
    entry(A, 256, "k2_end")
    dbg_stamp(A, 2, 0, sW)
    st = Stamper(A, 2, SRD_WS, sW)
    st.real("t_in")
    st.clk("in")
    load_ptr(A, SRD_WS, KA_WS)
    load_ptr(A, SRD_X, KA_X)
    load_ptr(A, SRD_SRC, KA_WD)
    srd_tail(A, SRD_WS, L.WS_USED)
    srd_tail(A, SRD_X, SZ_X)
    srd_tail(A, SRD_SRC, SZ_WD)
    prolog_common(A, 20, L.WO, L.OF)
    rowmajor_voff(A, vXO)
    rowmajor_soff(A, sT4)
    A("s_waitcnt lgkmcnt(0)")
    vq = VmQ(A)
    core = K2Core(A, vq, 20, 5)
    core.prologue_loads()
    for t in range(5):
        vq.issue(f"buffer_load_dwordx2 {v(vXR + 2 * t, 2)}, {v(vXO)}, {s(SRD_X, 4)}, {s(sT4)} offen offset:{32 * t}", ("ep", 0))
    mod_loads(A, vq, vGA, 0, ("ep", 1))
    mod_loads(A, vq, vC1, 2, ("ep", 2))
    st.clk("issued")
    k2_side_setup(A)
    core.run(before_first=lambda: st.clk("stage0"))
    st.clk("main")
    vq.wait(lambda t: t[0] == "ep")
    x1 = vW
    for t in range(5):
        unpack4(A, x1 + 4 * t, vXR + 2 * t)
    for t in range(5):
        for h in range(2):
            A(f"v_pk_fma_f32 {v(x1 + 4 * t + 2 * h, 2)}, {v(vGA + 4 * t + 2 * h, 2)}, {v(vACC + 4 * t + 2 * h, 2)}, {v(x1 + 4 * t + 2 * h, 2)}")
    x1_soff(A, sT0)
    pk = vXR
    for t in range(5):
        A(f"v_cvt_pk_bf16_f32 {v(pk + 2 * t)}, {v(x1 + 4 * t)}, {v(x1 + 4 * t + 1)}")
        A(f"v_cvt_pk_bf16_f32 {v(pk + 2 * t + 1)}, {v(x1 + 4 * t + 2)}, {v(x1 + 4 * t + 3)}")
    for t in range(5):
        vq.issue(f"buffer_store_dwordx2 {v(pk + 2 * t, 2)}, {v(vL8)}, {s(SRD_WS, 4)}, {s(sT0)} offen offset:{512 * t}", ("x1", t))
    xs = vACC
    pk2 = vGA
    for t in range(5):
        for h in range(2):
            A(f"v_pk_mul_f32 {v(xs + 4 * t + 2 * h, 2)}, {v(x1 + 4 * t + 2 * h, 2)}, {v(vC1 + 4 * t + 2 * h, 2)}")
    for t in range(5):
        A(f"v_cvt_pk_bf16_f32 {v(pk2 + 2 * t)}, {v(xs + 4 * t)}, {v(xs + 4 * t + 1)}")
        A(f"v_cvt_pk_bf16_f32 {v(pk2 + 2 * t + 1)}, {v(xs + 4 * t + 2)}, {v(xs + 4 * t + 3)}")
    A(f"s_lshl_b32 {s(sT1)}, {s(sMB)}, 2")
    A(f"s_add_u32 {s(sT1)}, {s(sT1)}, {s(sW)}")
    A(f"s_mul_i32 {s(sT1)}, {s(sT1)}, 20480")
    A(f"s_add_u32 {s(sT1)}, {s(sT1)}, {L.X1S}")
    A(f"s_mul_i32 {s(sT2)}, {s(sJ)}, 5")
    for t in range(5):
        A(f"s_add_u32 {s(sT3)}, {s(sT2)}, {t}")
        A(f"s_lshr_b32 {s(sT4)}, {s(sT3)}, 1")
        A(f"s_lshl_b32 {s(sT4)}, {s(sT4)}, 10")
        A(f"s_and_b32 {s(sT3)}, {s(sT3)}, 1")
        A(f"s_lshl_b32 {s(sT3)}, {s(sT3)}, 3")
        A(f"s_add_u32 {s(sT3)}, {s(sT3)}, {s(sT4)}")
        A(f"s_add_u32 {s(sO + t)}, {s(sT3)}, {s(sT1)}")
    for t in range(5):
        vq.issue(f"buffer_store_dwordx2 {v(pk2 + 2 * t, 2)}, {v(vL16)}, {s(SRD_WS, 4)}, {s(sO + t)} offen", ("x1s", t))
    sm = vC1
    A(f"v_pk_add_f32 {v(sm, 2)}, {v(x1, 2)}, {v(x1 + 2, 2)}")
    A(f"v_pk_add_f32 {v(sm + 2, 2)}, {v(x1 + 4, 2)}, {v(x1 + 6, 2)}")
    for c in range(4, 10, 2):
        A(f"v_pk_add_f32 {v(sm, 2)}, {v(sm, 2)}, {v(x1 + 2 * c, 2)}")
        A(f"v_pk_add_f32 {v(sm + 2, 2)}, {v(sm + 2, 2)}, {v(x1 + 2 * c + 2, 2)}")
    A(f"v_pk_add_f32 {v(sm, 2)}, {v(sm, 2)}, {v(sm + 2, 2)}")
    A(f"v_add_f32 {v(sm)}, {v(sm)}, {v(sm + 1)}")
    xlane_sum_g(A, sm, sm + 1)
    A(f"v_mul_f32 {v(sm)}, {hexf(1.0 / 80)}, {v(sm)}")
    A(f"v_sub_f32 {v(sm + 2)}, 0, {v(sm)}")
    for c in range(10):
        A(f"v_pk_add_f32 {v(x1 + 2 * c, 2)}, {v(x1 + 2 * c, 2)}, {v(sm + 2, 2)} op_sel_hi:[1,0]")
    A(f"v_pk_mul_f32 {v(sm + 4, 2)}, {v(x1, 2)}, {v(x1, 2)}")
    A(f"v_pk_mul_f32 {v(sm + 6, 2)}, {v(x1 + 2, 2)}, {v(x1 + 2, 2)}")
    for c in range(2, 10, 2):
        A(f"v_pk_fma_f32 {v(sm + 4, 2)}, {v(x1 + 2 * c, 2)}, {v(x1 + 2 * c, 2)}, {v(sm + 4, 2)}")
        A(f"v_pk_fma_f32 {v(sm + 6, 2)}, {v(x1 + 2 * c + 2, 2)}, {v(x1 + 2 * c + 2, 2)}, {v(sm + 6, 2)}")
    A(f"v_pk_add_f32 {v(sm + 4, 2)}, {v(sm + 4, 2)}, {v(sm + 6, 2)}")
    A(f"v_add_f32 {v(sm + 1)}, {v(sm + 4)}, {v(sm + 5)}")
    xlane_sum_g(A, sm + 1, sm + 2)
    A(f"v_and_b32 {v(vT0)}, 15, {v(vLANE)}")
    A(f"v_lshlrev_b32 {v(vT0)}, 6, {v(vT0)}")
    A(f"s_lshl_b32 {s(sT0)}, {s(sMB)}, 2")
    A(f"s_add_u32 {s(sT0)}, {s(sT0)}, {s(sW)}")
    A(f"s_lshl_b32 {s(sT0)}, {s(sT0)}, 10")
    A(f"s_lshl_b32 {s(sT1)}, {s(sJ)}, 3")
    A(f"s_add_u32 {s(sT0)}, {s(sT0)}, {s(sT1)}")
    A(f"s_add_u32 {s(sT0)}, {s(sT0)}, {L.ST2}")
    A("s_mov_b64 exec, 0xffff")
    vq.issue(f"buffer_store_dwordx2 {v(sm, 2)}, {v(vT0)}, {s(SRD_WS, 4)}, {s(sT0)} offen", ("st", 99))
    exec_all(A)
    st.clk("epi")
    A("s_cmp_lt_u32 s2, 120")
    A("s_cbranch_scc0 k2_fin")
    vq.wait(lambda t: t[0] == "side")
    A("s_barrier")
    fr = vS
    for ks in range(4):
        A(f"ds_read_b64_tr_b16 {v(fr + 4 * ks, 2)}, {v(vTRA)} offset:{ks * 4096}")
        A(f"ds_read_b64_tr_b16 {v(fr + 4 * ks + 2, 2)}, {v(vTRB)} offset:{ks * 4096}")
    for ks in range(4):
        A(f"s_waitcnt lgkmcnt({6 - 2 * ks})")
        vq.issue(f"buffer_store_dwordx4 {v(fr + 4 * ks, 4)}, {v(vL16)}, {s(SRD_WS, 4)}, {s(sDST)} offen", ("sst", ks))
        if ks < 3:
            A(f"s_add_u32 {s(sDST)}, {s(sDST)}, 5120")
    A.label("k2_fin", pad=False)
    st.clk("side")
    if common.STAMPS:
        A("s_waitcnt vmcnt(0)")
    st.clk("drained")
    st.real("t_out")
    st.flush(vT0, vT1)
    dbg_stamp(A, 2, 1, sW)
    A.label("k2_end", pad=False)
    A("s_endpgm")
    return dict(name=K2_NAME, grid=256, lds=K2_LDS, vgpr=200, agpr=80)


K4_NAME = "adaLN_cond__sliding_local_dilated__geglu_ffn__prompt_kernel"
K4_R = 6
K4_LDS = K4_R * 20480


def gen_k4(A):
    kernel_head(A, K4_NAME)
    entry(A, 256, "k4_end")
    dbg_stamp(A, 4, 0, sW)
    st = Stamper(A, 4, SRD_WS, sW)
    st.real("t_in")
    st.clk("in")
    load_ptr(A, SRD_WS, KA_WS)
    load_ptr(A, SRD_X, KA_OUT)
    srd_tail(A, SRD_WS, L.WS_USED)
    srd_tail(A, SRD_X, SZ_OUT)
    prolog_common(A, 48, L.WD, L.ACT)
    rowmajor_voff(A, vXO)
    x1_soff(A, sT4)
    A("s_waitcnt lgkmcnt(0)")
    vq = VmQ(A)
    for t in range(5):
        vq.issue(f"buffer_load_dwordx2 {v(vXR + 2 * t, 2)}, {v(vL8)}, {s(SRD_WS, 4)}, {s(sT4)} offen offset:{512 * t}", ("ep", 0))
    mod_loads(A, vq, vGA, 3, ("ep", 1))
    core = WCore(A, vq, 48, K4_R)
    core.R = 5
    core.prologue_loads()
    core.R = K4_R
    core_extra = core.stage_loads(5)
    core.extra_fill = lambda k: core_extra if k == 0 else []
    rowmajor_soff(A, sT4)
    st.clk("issued")
    core.run(before_first=lambda: st.clk("stage0"))
    st.clk("main")
    vq.wait(lambda t: t[0] == "ep")
    x1 = vW
    for t in range(5):
        unpack4(A, x1 + 4 * t, vXR + 2 * t)
    for t in range(5):
        for h in range(2):
            A(f"v_pk_fma_f32 {v(x1 + 4 * t + 2 * h, 2)}, {v(vGA + 4 * t + 2 * h, 2)}, {v(vACC + 4 * t + 2 * h, 2)}, {v(x1 + 4 * t + 2 * h, 2)}")
    pk = vXR
    for t in range(5):
        A(f"v_cvt_pk_bf16_f32 {v(pk + 2 * t)}, {v(x1 + 4 * t)}, {v(x1 + 4 * t + 1)}")
        A(f"v_cvt_pk_bf16_f32 {v(pk + 2 * t + 1)}, {v(x1 + 4 * t + 2)}, {v(x1 + 4 * t + 3)}")
    for t in range(5):
        vq.issue(f"buffer_store_dwordx2 {v(pk + 2 * t, 2)}, {v(vXO)}, {s(SRD_X, 4)}, {s(sT4)} offen offset:{32 * t}", ("out", t))
    st.clk("epi")
    if common.STAMPS:
        A("s_waitcnt vmcnt(0)")
    st.clk("drained")
    st.real("t_out")
    st.flush(vT0, vT1)
    dbg_stamp(A, 4, 1, sW)
    A.label("k4_end", pad=False)
    A("s_endpgm")
    return dict(name=K4_NAME, grid=256, lds=K4_LDS, vgpr=200, agpr=192)
```

```python
from common import *
import common
from core import Core
from k2 import xlane_sum_g

NAME = "k3_geglu_kernel"
G, R = 2, 5
RING = 0
UT = R * G * 12288
LDS = UT + 1536

SRD_WS = 8
sW, sMB, sJ = 32, 33, 34
sS, sM0, sP0, sP1 = 35, 36, 37, 38
sT0, sT1, sT2, sT3 = 40, 41, 42, 43
vLANE, vL16, vL16H, vT0, vT1, vT2, vT3, vG16 = 1, 2, 3, 4, 5, 6, 7, 8
vACC = 16
vS = 112
vST = 208
vR = 216
vUTL = 224


def acc(p, t):
    return vACC + (p * 12 + t) * 4


class K3Core(Core):
    def stage_loads(self, st):
        A, vq = self.A, self.vq
        tag = ("st", st)
        out = []
        for kk in range(G):
            ks = st * G + kk

            def s0(ks=ks):
                A(f"s_add_u32 m0, {s(sM0)}, {RING + (ks % (R * G)) * 12288}")
                A(f"s_add_u32 {s(sT0)}, {s(sS)}, {ks * 12288}")
                vq.issue(f"buffer_load_dwordx4 {v(vL16)}, {s(SRD_WS, 4)}, {s(sT0)} offen lds", tag)
            out.append(s0)
            for u in (1, 2):
                out.append(lambda u=u: vq.issue(f"buffer_load_dwordx4 {v(vL16)}, {s(SRD_WS, 4)}, {s(sT0)} offen offset:{1024 * u} lds", tag))

            def p0(ks=ks):
                A(f"s_add_u32 {s(sT1)}, {s(sP0)}, {ks * 1024}")
                vq.issue(f"buffer_load_dwordx4 {a(ks * 8, 4)}, {v(vL16)}, {s(SRD_WS, 4)}, {s(sT1)} offen", tag)

            def p1(ks=ks):
                A(f"s_add_u32 {s(sT1)}, {s(sP1)}, {ks * 1024}")
                vq.issue(f"buffer_load_dwordx4 {a(ks * 8 + 4, 4)}, {v(vL16)}, {s(SRD_WS, 4)}, {s(sT1)} offen", tag)
            out += [p0, p1]
        return out

    def step_reads(self, ks):
        out = []
        for t in range(12):
            addr = RING + (ks % (R * G)) * 12288 + t * 1024
            reg, off = (vL16, addr) if addr < 65536 else (vL16H, addr - 65536)
            out.append(f"ds_read_b128 {v(vS + (ks & 1) * 48 + 4 * t, 4)}, {v(reg)} offset:{off}")
        return out

    def step_mfmas(self, ks):
        out = []
        for t in range(12):
            for p in range(2):
                c = "0" if ks == 0 else v(acc(p, t), 4)
                out.append(f"v_mfma_f32_16x16x32_bf16 {v(acc(p, t), 4)}, {v(vS + (ks & 1) * 48 + 4 * t, 4)}, {a(ks * 8 + 4 * p, 4)}, {c}")
        return out


def gen(A):
    kernel_head(A, NAME)
    entry(A, 256, "k3_end")
    dbg_stamp(A, 3, 0, sW)
    st = Stamper(A, 3, SRD_WS, sW)
    st.real("t_in")
    st.clk("in")
    load_ptr(A, SRD_WS, KA_WS)
    srd_tail(A, SRD_WS, L.WS_USED)
    wave_id(A, sW, vT0, vLANE)
    A(f"v_lshlrev_b32 {v(vL16)}, 4, {v(vLANE)}")
    A(f"v_add_u32 {v(vL16H)}, 0x10000, {v(vL16)}")
    A(f"v_lshrrev_b32 {v(vG16)}, 4, {v(vLANE)}")
    A(f"v_lshlrev_b32 {v(vG16)}, 4, {v(vG16)}")
    A(f"s_and_b32 {s(sT0)}, s2, 7")
    A(f"s_lshr_b32 {s(sT1)}, s2, 3")
    A(f"s_lshr_b32 {s(sMB)}, {s(sT0)}, 1")
    A(f"s_lshl_b32 {s(sMB)}, {s(sMB)}, 2")
    A(f"s_lshr_b32 {s(sT2)}, {s(sT1)}, 3")
    A(f"s_add_u32 {s(sMB)}, {s(sMB)}, {s(sT2)}")
    A(f"s_and_b32 {s(sJ)}, {s(sT0)}, 1")
    A(f"s_lshl_b32 {s(sJ)}, {s(sJ)}, 3")
    A(f"s_and_b32 {s(sT2)}, {s(sT1)}, 7")
    A(f"s_add_u32 {s(sJ)}, {s(sJ)}, {s(sT2)}")
    A(f"s_mul_i32 {s(sM0)}, {s(sW)}, 3072")
    A(f"s_mul_i32 {s(sS)}, {s(sJ)}, {20 * 12288}")
    A(f"s_add_u32 {s(sS)}, {s(sS)}, {s(sM0)}")
    A(f"s_add_u32 {s(sS)}, {s(sS)}, {L.WGU}")
    A(f"s_lshl_b32 {s(sT0)}, {s(sMB)}, 3")
    A(f"s_lshl_b32 {s(sT1)}, {s(sW)}, 1")
    A(f"s_add_u32 {s(sT0)}, {s(sT0)}, {s(sT1)}")
    A(f"s_mul_i32 {s(sP0)}, {s(sT0)}, 20480")
    A(f"s_add_u32 {s(sP0)}, {s(sP0)}, {L.X1S}")
    A(f"s_add_u32 {s(sP1)}, {s(sP0)}, 20480")
    A(f"s_lshl_b32 {s(sT2)}, {s(sT0)}, 10")
    A(f"s_add_u32 {s(sT2)}, {s(sT2)}, {L.ST2}")
    A(f"v_and_b32 {v(vT0)}, 15, {v(vLANE)}")
    A(f"v_lshl_add_u32 {v(vT0)}, {v(vT0)}, 6, {v(vG16)}")
    A(f"v_mul_u32_u24 {v(vT1)}, 43, v0")
    A(f"v_lshrrev_b32 {v(vT1)}, 10, {v(vT1)}")
    A(f"v_mul_u32_u24 {v(vT2)}, 24, {v(vT1)}")
    A(f"v_sub_u32 {v(vT2)}, v0, {v(vT2)}")
    A(f"v_mul_u32_u24 {v(vT1)}, {1536 * 4}, {v(vT1)}")
    A(f"v_lshl_add_u32 {v(vT1)}, {v(vT2)}, 4, {v(vT1)}")
    A(f"v_mov_b32 {v(vT2)}, 0x40000000")
    A(f"v_cmp_gt_u32 vcc, 96, v0")
    A(f"v_cndmask_b32 {v(vT1)}, {v(vT2)}, {v(vT1)}, vcc")
    A(f"s_mul_i32 {s(sT3)}, {s(sJ)}, 384")
    A(f"s_add_u32 {s(sT3)}, {s(sT3)}, {L.UT2}")
    A("s_waitcnt lgkmcnt(0)")
    vq = VmQ(A)
    for p in range(2):
        vq.issue(f"buffer_load_dwordx4 {v(vST + 4 * p, 4)}, {v(vT0)}, {s(SRD_WS, 4)}, {s(sT2)} offen offset:{1024 * p}", ("pre", 0))
    for kc in range(5):
        vq.issue(f"buffer_load_dwordx4 {v(vUTL + 4 * kc, 4)}, {v(vT1)}, {s(SRD_WS, 4)}, {s(sT3)} offen", ("pre", 1))
        if kc < 4:
            A(f"s_add_u32 {s(sT3)}, {s(sT3)}, {2 * 3072 * 4}")
    core = K3Core(A, vq, 20, G, R)
    core.prologue_loads()
    st.clk("issued")
    vq.wait(lambda t: t[0] == "pre")
    for kc in range(1, 5):
        for h in range(2):
            A(f"v_pk_add_f32 {v(vUTL + 2 * h, 2)}, {v(vUTL + 2 * h, 2)}, {v(vUTL + 4 * kc + 2 * h, 2)}")
    A(f"v_lshlrev_b32 {v(vT2)}, 4, v0")
    A("v_cmp_gt_u32 vcc, 96, v0")
    A(f"s_and_saveexec_b64 {s(sT0, 2)}, vcc")
    A(f"ds_write_b128 {v(vT2)}, {v(vUTL, 4)} offset:{UT}" if UT < 65536 else
      f"v_add_u32 {v(vT2)}, {UT}, {v(vT2)}\nds_write_b128 {v(vT2)}, {v(vUTL, 4)}")
    A(f"s_mov_b64 exec, {s(sT0, 2)}")
    for p in range(2):
        b = vST + 4 * p
        m, t0, t1 = vUTL + 4, vUTL + 5, vUTL + 6
        A(f"v_add_f32 {v(m)}, {v(b)}, {v(b + 2)}")
        xlane_sum_g(A, m, t0)
        A(f"v_mul_f32 {v(m)}, 0.125, {v(m)}" if False else f"v_mul_f32 {v(m)}, {hexf(0.125)}, {v(m)}")
        A(f"v_sub_f32 {v(t0)}, {v(b)}, {v(m)}")
        A(f"v_sub_f32 {v(t1)}, {v(b + 2)}, {v(m)}")
        A(f"v_mul_f32 {v(t0)}, {v(t0)}, {v(t0)}")
        A(f"v_fmac_f32 {v(t0)}, {v(t1)}, {v(t1)}")
        A(f"v_add_f32 {v(t1)}, {v(b + 1)}, {v(b + 3)}")
        A(f"v_fmac_f32 {v(t1)}, {hexf(80.0)}, {v(t0)}")
        xlane_sum_g(A, t1, t0)
        A(f"v_mov_b32 {v(t0)}, {hexf(1e-5)}")
        A(f"v_fmac_f32 {v(t0)}, {hexf(1.0 / 640)}, {v(t1)}")
        A(f"v_rsq_f32 {v(vR + 2 * p)}, {v(t0)}")
        A(f"v_mul_f32 {v(vR + 4 + 2 * p)}, {v(m)}, {v(vR + 2 * p)}")
        A(f"v_sub_f32 {v(vR + 4 + 2 * p)}, 0, {v(vR + 4 + 2 * p)}")
    A("s_waitcnt lgkmcnt(0)")
    st.clk("pre")
    core.run(before_first=lambda: st.clk("stage0"))
    st.clk("main")
    A(f"v_add_u32 {v(vT0)}, {UT}, {v(vG16)}")
    c1 = -2.0 * LOG2E * 0.7978845608028654
    c2 = c1 * 0.044715
    A(f"s_mov_b32 {s(sT0)}, {hexf(c1)}")
    A(f"s_mov_b32 {s(sT1)}, {hexf(c1)}")
    A(f"s_mov_b32 {s(sT2)}, {hexf(c2)}")
    A(f"s_mov_b32 {s(sT3)}, {hexf(c2)}")
    A(f"v_mov_b32 {v(vT2)}, {hexf(c1)}")
    A(f"v_mov_b32 {v(vT3)}, {hexf(c1)}")
    sO = 44
    A(f"s_lshl_b32 {s(sO)}, {s(sMB)}, 3")
    A(f"s_lshl_b32 {s(sO + 1)}, {s(sW)}, 1")
    A(f"s_add_u32 {s(sO)}, {s(sO)}, {s(sO + 1)}")
    A(f"s_mul_i32 {s(sO)}, {s(sO)}, 48")
    A(f"s_mul_i32 {s(sO + 1)}, {s(sJ)}, 3")
    A(f"s_add_u32 {s(sO)}, {s(sO)}, {s(sO + 1)}")
    A(f"s_lshl_b32 {s(sO)}, {s(sO)}, 10")
    A(f"s_add_u32 {s(sO)}, {s(sO)}, {L.ACT}")
    A(f"s_add_u32 {s(sO + 1)}, {s(sO)}, {48 * 1024}")
    ut = vS
    wk = vS + 32
    lq = LgQ(A)

    def rd(t6):
        b = ut + 16 * (t6 & 1)
        for k in range(4):
            lq.issue(f"ds_read_b128 {v(b + 4 * k, 4)}, {v(vT0)} offset:{(k * 96 + 16 * t6) * 4}", t6)
    rd(0)
    for t6 in range(6):
        if t6 + 1 < 6:
            rd(t6 + 1)
        lq.wait(lambda t: t <= t6)
        b = ut + 16 * (t6 & 1)
        ug, uu, tg, tu = b, b + 4, b + 8, b + 12
        for p in range(2):
            g, u = acc(p, t6), acc(p, 6 + t6)
            r, mr = v(vR + 2 * p, 2), v(vR + 4 + 2 * p, 2)
            w0 = wk + 16 * p
            for h in range(2):
                A(f"v_pk_fma_f32 {v(w0 + 2 * h, 2)}, {v(ug + 2 * h, 2)}, {mr}, {v(tg + 2 * h, 2)} op_sel_hi:[1,0,1]")
                A(f"v_pk_fma_f32 {v(w0 + 4 + 2 * h, 2)}, {v(uu + 2 * h, 2)}, {mr}, {v(tu + 2 * h, 2)} op_sel_hi:[1,0,1]")
            for h in range(2):
                A(f"v_pk_fma_f32 {v(g + 2 * h, 2)}, {v(g + 2 * h, 2)}, {r}, {v(w0 + 2 * h, 2)} op_sel_hi:[1,0,1]")
                A(f"v_pk_fma_f32 {v(u + 2 * h, 2)}, {v(u + 2 * h, 2)}, {r}, {v(w0 + 4 + 2 * h, 2)} op_sel_hi:[1,0,1]")
            for h in range(2):
                A(f"v_pk_mul_f32 {v(w0 + 2 * h, 2)}, {v(g + 2 * h, 2)}, {v(g + 2 * h, 2)}")
            for h in range(2):
                A(f"v_pk_fma_f32 {v(w0 + 2 * h, 2)}, {v(w0 + 2 * h, 2)}, {s(sT2, 2)}, {v(vT2, 2)}")
            for h in range(2):
                A(f"v_pk_mul_f32 {v(w0 + 2 * h, 2)}, {v(w0 + 2 * h, 2)}, {v(g + 2 * h, 2)}")
            for h in range(2):
                A(f"v_pk_mul_f32 {v(u + 2 * h, 2)}, {v(u + 2 * h, 2)}, {v(g + 2 * h, 2)}")
            for q in range(4):
                A(f"v_exp_f32 {v(w0 + q)}, {v(w0 + q)}")
            for h in range(2):
                A(f"v_pk_add_f32 {v(w0 + 2 * h, 2)}, {v(w0 + 2 * h, 2)}, 1.0 op_sel_hi:[1,0]")
            for q in range(4):
                A(f"v_rcp_f32 {v(w0 + q)}, {v(w0 + q)}")
            for h in range(2):
                A(f"v_pk_mul_f32 {v(u + 2 * h, 2)}, {v(u + 2 * h, 2)}, {v(w0 + 2 * h, 2)}")
            dst = acc(p, t6 & ~1) + 2 * (t6 & 1)
            if t6 & 1:
                A(f"v_cvt_pk_bf16_f32 {v(dst)}, {v(u)}, {v(u + 1)}")
                A(f"v_cvt_pk_bf16_f32 {v(dst + 1)}, {v(u + 2)}, {v(u + 3)}")
                vq.issue(f"buffer_store_dwordx4 {v(acc(p, t6 & ~1), 4)}, {v(vL16)}, {s(SRD_WS, 4)}, {s(sO + p)} offen offset:{1024 * (t6 >> 1)}", ("act", t6))
            else:
                A(f"v_cvt_pk_bf16_f32 {v(dst)}, {v(u)}, {v(u + 1)}")
                A(f"v_cvt_pk_bf16_f32 {v(dst + 1)}, {v(u + 2)}, {v(u + 3)}")
    st.clk("epi")
    if common.STAMPS:
        A("s_waitcnt vmcnt(0)")
    st.clk("drained")
    st.real("t_out")
    st.flush(vT0, vT1)
    dbg_stamp(A, 3, 1, sW)
    A.label("k3_end", pad=False)
    A("s_endpgm")
    return dict(name=NAME, grid=256, lds=LDS, vgpr=248, agpr=160)
```

```python
import sys, os
sys.path.insert(0, os.path.dirname(os.path.abspath(__file__)))
from common import *
import common, json
import k0, k1, k2, k3

HEADER = open(os.path.join(os.path.dirname(os.path.abspath(__file__)), "header.txt")).read()


def build(upto=5):
    gens = [k0.gen, k1.gen, k2.gen_k2, k3.gen, k2.gen_k4][:upto]
    body, infos = [], []
    for g in gens:
        A = Asm()
        info = g(A)
        infos.append(info)
        body.append(A.text())
    out = HEADER
    for i in infos:
        out += f"; @launch kernel={i['name']} grid=({i['grid']},1,1) block=(256,1,1) lds={i['lds']}\n"
    out += '.amdgcn_target "amdgcn-amd-amdhsa--gfx950"\n'
    for b in body:
        out += b
    for i in infos:
        out += kernel_desc(i["name"], 256 if common.DBGTS else i["vgpr"], i["agpr"])
    return out


if __name__ == "__main__":
    if "--stamps" in sys.argv:
        sys.argv.remove("--stamps")
        common.STAMPS = True
    if "--dbgts" in sys.argv:
        sys.argv.remove("--dbgts")
        common.DBGTS = True
    dst = sys.argv[1] if len(sys.argv) > 1 else "adaLN_cond__sliding_local_dilated__geglu_ffn__prompt.s"
    txt = build()
    open(dst, "w").write(txt)
    if common.STAMPS:
        json.dump(common.STAMP_NAMES, open(dst + ".json", "w"))
    print("wrote", dst, len(txt), "bytes")
```

```python
from asmlib import *
import layout as L

KA_X, KA_WQKV, KA_WO, KA_BX, KA_WG, KA_WU, KA_WD, KA_C, KA_WMOD, KA_OUT, KA_DBG, KA_WS = [8 * i for i in range(12)]
SZ_X = 2048 * 640 * 2
SZ_WQKV = 640 * 1920 * 2
SZ_WO = 640 * 640 * 2
SZ_WG = 640 * 1536 * 2
SZ_WD = 1536 * 640 * 2
SZ_C = 640 * 2
SZ_WMOD = 640 * 3840 * 2
SZ_OUT = 2048 * 640 * 2
LOG2E = 1.4426950408889634


def f2u(x):
    import struct
    return struct.unpack("<I", struct.pack("<f", x))[0]


def hexf(x):
    return hex(f2u(x))


def kernel_head(A, name):
    A.raw(".text")
    A.raw(f".globl {name}")
    A.raw(".p2align 8")
    A.raw(f".type {name},@function")
    A.raw(f"{name}:")


def kernel_desc(name, nvgpr_arch, nagpr, nsgpr=102):
    acc = (nvgpr_arch + 3) // 4 * 4
    total = acc + nagpr if nagpr else nvgpr_arch
    return f""".section .rodata,"a"
.p2align 6
.amdhsa_kernel {name}
  .amdhsa_next_free_vgpr {total}
  .amdhsa_next_free_sgpr {nsgpr}
  .amdhsa_accum_offset {acc}
  .amdhsa_group_segment_fixed_size 0
  .amdhsa_kernarg_size 96
  .amdhsa_user_sgpr_count 2
  .amdhsa_user_sgpr_kernarg_segment_ptr 1
  .amdhsa_system_sgpr_workgroup_id_x 1
  .amdhsa_float_denorm_mode_32 3
.end_amdhsa_kernel
"""


def load_ptr(A, srd, ka_off):
    A(f"s_load_dwordx2 {s(srd, 2)}, s[0:1], {ka_off}")


def srd_tail(A, srd, size):
    A(f"s_mov_b32 {s(srd + 2)}, {size}")
    A(f"s_mov_b32 {s(srd + 3)}, 0x20000")


def entry(A, nwg, endlabel):
    A(f"s_cmp_ge_u32 s2, {nwg}")
    A(f"s_cbranch_scc1 {endlabel}")


def wave_id(A, sdst, vtmp, vlane):
    A(f"v_lshrrev_b32 {v(vtmp)}, 6, v0")
    A(f"v_and_b32 {v(vlane)}, 63, v0")
    A(f"v_readfirstlane_b32 {s(sdst)}, {v(vtmp)}")


def swz_src_chunk(A, vdst, vlane, swave, vt, st):
    A(f"v_bfe_u32 {v(vt)}, {v(vlane)}, 4, 1")
    A(f"v_bfe_u32 {v(vdst)}, {v(vlane)}, 5, 1")
    A(f"s_and_b32 {s(st)}, {s(swave)}, 1")
    A(f"v_xor_b32 {v(vdst)}, {s(st)}, {v(vdst)}")
    A(f"v_lshl_or_b32 {v(vdst)}, {v(vdst)}, 1, {v(vt)}")
    A(f"v_lshlrev_b32 {v(vdst)}, 1, {v(vdst)}")
    A(f"v_and_b32 {v(vt)}, 7, {v(vlane)}")
    A(f"v_xor_b32 {v(vdst)}, {v(vdst)}, {v(vt)}")


def tr_addr(A, vdst, vlane, h, perm, stile, t0, t1, t3, t2, rowbytes=128, swz=True, tile_is_sgpr=True):
    A(f"v_lshrrev_b32 {v(t0)}, 4, {v(vlane)}")
    A(f"v_bfe_u32 {v(t1)}, {v(vlane)}, 2, 2")
    if perm == "nat":
        A(f"v_lshl_add_u32 {v(t0)}, {v(t0)}, 3, {v(t1)}")
        if h:
            A(f"v_add_u32 {v(t0)}, 4, {v(t0)}")
    else:
        A(f"v_lshl_add_u32 {v(t0)}, {v(t0)}, 2, {v(t1)}")
        if h:
            A(f"v_add_u32 {v(t0)}, 16, {v(t0)}")
    A(f"v_bfe_u32 {v(t1)}, {v(vlane)}, 1, 1")
    if tile_is_sgpr:
        A(f"s_lshl_b32 {s(t2)}, {s(stile)}, 1")
        A(f"v_add_u32 {v(t1)}, {s(t2)}, {v(t1)}")
    else:
        if stile:
            A(f"v_add_u32 {v(t1)}, {2 * stile}, {v(t1)}")
    if swz:
        A(f"v_bfe_u32 {v(vdst)}, {v(t0)}, 2, 1")
        A(f"v_bfe_u32 {v(t3)}, {v(t0)}, 3, 1")
        A(f"v_xor_b32 {v(vdst)}, {v(vdst)}, {v(t3)}")
        A(f"v_bfe_u32 {v(t3)}, {v(t0)}, 1, 1")
        A(f"v_lshl_or_b32 {v(vdst)}, {v(vdst)}, 1, {v(t3)}")
        A(f"v_lshlrev_b32 {v(vdst)}, 1, {v(vdst)}")
        A(f"v_xor_b32 {v(t1)}, {v(t1)}, {v(vdst)}")
    A(f"v_lshlrev_b32 {v(t1)}, 4, {v(t1)}")
    A(f"v_and_b32 {v(vdst)}, 1, {v(vlane)}")
    A(f"v_lshl_add_u32 {v(t1)}, {v(vdst)}, 3, {v(t1)}")
    sh = {128: 7, 256: 8}[rowbytes]
    A(f"v_lshl_add_u32 {v(vdst)}, {v(t0)}, {sh}, {v(t1)}")


def round_bf16(A, vdst, vsrc0, vsrc1, vtmp):
    A(f"v_cvt_pk_bf16_f32 {v(vtmp)}, {v(vsrc0)}, {v(vsrc1)}")
    A(f"v_lshlrev_b32 {v(vdst)}, 16, {v(vtmp)}")
    A(f"v_and_b32 {v(vdst + 1)}, 0xffff0000, {v(vtmp)}")


STAMPS = False
sSTAMP = 72


class Stamper:
    def __init__(self, A, kidx, srd_ws, swave):
        self.A, self.k, self.srd, self.sw, self.n = A, kidx, srd_ws, swave, 0
        self.names = []

    def real(self, name):
        if not STAMPS:
            return
        A = self.A
        A(f"s_memrealtime {s(sSTAMP, 2)}")
        A("s_waitcnt lgkmcnt(0)")
        A(f"s_mov_b32 {s(sSTAMP + 4 + self.n)}, {s(sSTAMP)}")
        self.names.append(name)
        self.n += 1

    def clk(self, name):
        if not STAMPS:
            return
        A = self.A
        A(f"s_memtime {s(sSTAMP, 2)}")
        A("s_waitcnt lgkmcnt(0)")
        A(f"s_mov_b32 {s(sSTAMP + 4 + self.n)}, {s(sSTAMP)}")
        self.names.append(name)
        self.n += 1

    def flush(self, vt, vt2):
        if not STAMPS:
            return
        A = self.A
        lab = f"stamp_skip_{self.k}"
        A(f"s_cmp_eq_u32 {s(self.sw)}, 0")
        A(f"s_cbranch_scc0 {lab}")
        A(f"s_lshl_b32 {s(sSTAMP)}, s2, 6")
        A(f"s_add_u32 {s(sSTAMP)}, {s(sSTAMP)}, {L.TS + self.k * 256 * 64}")
        A(f"v_mov_b32 {v(vt2)}, 0")
        A("s_mov_b64 exec, 1")
        for i in range(self.n):
            A(f"v_mov_b32 {v(vt)}, {s(sSTAMP + 4 + i)}")
            A(f"buffer_store_dword {v(vt)}, {v(vt2)}, {s(self.srd, 4)}, {s(sSTAMP)} offen offset:{4 * i}")
            A("s_waitcnt vmcnt(0)")
        A("s_mov_b64 exec, -1")
        A.label(lab, pad=False)
        STAMP_NAMES[self.k] = self.names


STAMP_NAMES = {}


DBGTS = False


def dbg_stamp(A, kidx, slot, swave):
    if not DBGTS:
        return
    lab = f"dbgts_{kidx}_{slot}"
    A("s_cmp_eq_u32 s2, 0")
    A(f"s_cbranch_scc0 {lab}")
    A("s_load_dwordx2 s[96:97], s[0:1], 80")
    A("s_memrealtime s[94:95]")
    A("s_waitcnt lgkmcnt(0)")
    A(f"s_add_u32 s96, s96, {512 * (4 - kidx)}")
    A("s_addc_u32 s97, s97, 0")
    A("s_mov_b32 s98, 256")
    A("s_mov_b32 s99, 0x20000")
    A("v_mov_b32 v250, s94")
    A("v_mov_b32 v251, 0")
    A("s_mov_b64 s[92:93], exec")
    A("s_mov_b64 exec, 1")
    A(f"buffer_store_dword v250, v251, s[96:99], 0 offen offset:{4 * (2 * kidx + slot)}")
    A("s_mov_b64 exec, s[92:93]")
    A.label(lab, pad=False)


PREFETCH_CODE = False


def code_prefetch(A, first_label, last_label, srd, vt, vd, st):
    if not PREFETCH_CODE:
        return
    A(f"s_getpc_b64 {s(srd, 2)}")
    A.raw("cp_here:")
    A(f"s_add_u32 {s(srd)}, {s(srd)}, {first_label}-cp_here")
    A(f"s_addc_u32 {s(srd + 1)}, {s(srd + 1)}, -1")
    A(f"s_mov_b32 {s(srd + 2)}, {last_label}-{first_label}")
    A(f"s_mov_b32 {s(srd + 3)}, 0x20000")
    A(f"s_lshr_b32 {s(st)}, s2, 3")
    A(f"s_lshl_b32 {s(st)}, {s(st)}, 11")
    A(f"v_lshlrev_b32 {v(vt)}, 3, v0")
    A(f"buffer_load_dwordx2 {v(vd, 2)}, {v(vt)}, {s(srd, 4)}, {s(st)} offen")
```

```python
import sys, os
sys.path.insert(0, os.path.dirname(os.path.abspath(__file__)))
from common import *
import common, json
import k0, k1, k2, k3

HEADER = open(os.path.join(os.path.dirname(os.path.abspath(__file__)), "header.txt")).read()


def build(upto=5):
    gens = [k0.gen, k1.gen, k2.gen_k2, k3.gen, k2.gen_k4][:upto]
    body, infos = [], []
    for g in gens:
        A = Asm()
        info = g(A)
        infos.append(info)
        body.append(A.text())
    out = HEADER
    for i in infos:
        out += f"; @launch kernel={i['name']} grid=({i['grid']},1,1) block=(256,1,1) lds={i['lds']}\n"
    out += '.amdgcn_target "amdgcn-amd-amdhsa--gfx950"\n'
    for b in body:
        out += b
    out += "all_code_end:\n    s_endpgm\n"
    for i in infos:
        out += kernel_desc(i["name"], 256 if common.DBGTS else i["vgpr"], i["agpr"])
    return out


if __name__ == "__main__":
    if "--stamps" in sys.argv:
        sys.argv.remove("--stamps")
        common.STAMPS = True
    if "--dbgts" in sys.argv:
        sys.argv.remove("--dbgts")
        common.DBGTS = True
    if "--pfcode" in sys.argv:
        sys.argv.remove("--pfcode")
        common.PREFETCH_CODE = True
    dst = sys.argv[1] if len(sys.argv) > 1 else "adaLN_cond__sliding_local_dilated__geglu_ffn__prompt.s"
    txt = build()
    open(dst, "w").write(txt)
    if common.STAMPS:
        json.dump(common.STAMP_NAMES, open(dst + ".json", "w"))
    print("wrote", dst, len(txt), "bytes")
```
